```python
import torch

def _softmax(x, axis=-1):
    return torch.softmax(x, dim=axis)
def _gelu(x):
    return torch.nn.functional.gelu(x, approximate="tanh")
def _silu(x):
    return torch.nn.functional.silu(x)
def _sigmoid(x):
    return torch.sigmoid(x)
def _layernorm(x, axis=-1, eps=1e-5):
    m = x.mean(dim=axis, keepdim=True)
    v = x.var(dim=axis, keepdim=True, unbiased=False)
    return (x - m) / torch.sqrt(v + eps)
def _scatter_add(tgt, idx, src, axis=0):
    return tgt.clone().index_add_(axis, idx, src)
def _segment_sum(src, seg, n):
    out = torch.zeros((n,) + src.shape[1:], dtype=src.dtype)
    return out.index_add_(0, seg, src)
def _pad(x, pw):
    flat = tuple(v for pair in reversed(pw) for v in pair)
    return torch.nn.functional.pad(x, flat)

kernel_name = 'recurrent_scan__softmax_full_mha__glu_gated_bilinear__prompt'

def setup_inputs():

    _w = (lambda a: (lambda t: t.to(torch.bfloat16) if t.is_floating_point() else t)(torch.as_tensor(a)))
    def _A_setup():
        B, S, D = 1, 2048, 576
        return {
            "x": _w((lambda *s: torch.randn(*s, dtype=torch.bfloat16) * 0.05)(B, S, D)),
            "wqkv": _w((lambda *s: torch.randn(*s, dtype=torch.bfloat16) * 0.2)(D, 3 * D)),
            "wo": _w((lambda *s: torch.randn(*s, dtype=torch.bfloat16) * 0.2)(D, D)),
        }
    _A_in = _A_setup()

    def _B_setup():
        B, S, D, F = 1, 2048, 576, 4608
        return {
            "x": _w((lambda *s: torch.randn(*s, dtype=torch.bfloat16) * 0.05)(B, S, D)),
            "w_gate": _w((lambda *s: torch.randn(*s, dtype=torch.bfloat16) * 0.1)(D, F) * (D ** -0.5)),
            "w_up": _w((lambda *s: torch.randn(*s, dtype=torch.bfloat16) * 0.1)(D, F) * (D ** -0.5)),
            "w_down": _w((lambda *s: torch.randn(*s, dtype=torch.bfloat16) * 0.1)(F, D) * (F ** -0.5)),
        }
    _B_in = _B_setup()

    return {
        "A_x": _A_in["x"],
        "A_wqkv": _A_in["wqkv"],
        "A_wo": _A_in["wo"],
        "B_x": _B_in["x"],
        "B_w_gate": _B_in["w_gate"],
        "B_w_up": _B_in["w_up"],
        "B_w_down": _B_in["w_down"],
    }

def reference(A_x, A_wqkv, A_wo, B_x, B_w_gate, B_w_up, B_w_down):
    def _A_ref(x, wqkv, wo):
        B, S, D = x.shape
        H = 32; Dh = D // H
        qkv = (lambda x, *d: x.permute(*d))((x @ wqkv).reshape(B, S, 3, H, Dh), 2, 0, 3, 1, 4)
        q, k, v = qkv[0], qkv[1], qkv[2]
        scale = Dh ** -0.5
        scores = torch.einsum("bhqd,bhkd->bhqk", q, k) * scale
        p = _softmax(scores, axis=-1)
        o = torch.einsum("bhqk,bhkd->bhqd", p, v)
        return (lambda x, *d: x.permute(*d))(o, 0, 2, 1, 3).reshape(B, S, D) @ wo

    def _B_ref(x, w_gate, w_up, w_down):
        g = torch.einsum("bsd,df->bsf", x, w_gate)
        u = torch.einsum("bsd,df->bsf", x, w_up)
        h = g * u
        return torch.einsum("bsf,fd->bsd", h, w_down)

    x = A_x
    xn = _layernorm(x, axis=-1)
    s = _A_ref(xn, A_wqkv, A_wo)
    g = _silu(_B_ref(xn, B_w_gate, B_w_up, B_w_down))
    return x + s * g
```

```python
import re, sys

TRANS = ("v_exp_f32","v_log_f32","v_rcp_f32","v_rsq_f32","v_sqrt_f32","v_sin_f32","v_cos_f32","v_exp_f16","v_rcp_iflag_f32")

def parse_reg(tok):
    tok = tok.strip()
    neg = tok.startswith('-')
    if neg: tok = tok[1:]
    if tok.startswith('|') and tok.endswith('|'): tok = tok[1:-1]
    m = re.fullmatch(r'([vas])(\d+)', tok)
    if m: return [(m.group(1), int(m.group(2)))]
    m = re.fullmatch(r'([vas])\[(\d+):(\d+)\]', tok)
    if m: return [(m.group(1), i) for i in range(int(m.group(2)), int(m.group(3))+1)]
    if tok == 'vcc': return [('s',106),('s',107)]
    if tok == 'vcc_lo': return [('s',106)]
    if tok == 'vcc_hi': return [('s',107)]
    if tok == 'exec': return [('x',0),('x',1)]
    if tok == 'exec_lo': return [('x',0)]
    if tok == 'exec_hi': return [('x',1)]
    if tok == 'm0': return [('m',0)]
    if tok == 'scc': return [('c',0)]
    return None

def split_ops(s):
    out=[]; depth=0; cur=''
    for ch in s:
        if ch=='[': depth+=1
        if ch==']': depth-=1
        if ch==',' and depth==0:
            out.append(cur.strip()); cur=''
        else: cur+=ch
    if cur.strip(): out.append(cur.strip())
    return out

class Ins:
    __slots__=("text","op","dst","src","kind","label","target","mods","passes","srcA","srcB","srcC","note","pre_wait","pre_nop","lds","nstates","storedata","opsraw","manual")
    def __init__(self, text):
        self.text=text; self.label=None; self.target=None; self.dst=[]; self.src=[]; self.kind=None
        self.mods=''; self.passes=0; self.srcA=[]; self.srcB=[]; self.srcC=[]; self.pre_wait={}; self.pre_nop=0
        self.lds=False; self.nstates=1; self.storedata=[]; self.op=None; self.opsraw=[]
        t=text.split(';')[0].strip()
        if not t: self.kind='empty'; return
        if t.endswith(':'):
            self.kind='label'; self.label=t[:-1]; return
        if t.startswith('.'):
            self.kind='directive'; return
        sp=t.split(None,1)
        op=sp[0]; self.op=op
        rest=sp[1] if len(sp)>1 else ''
        if op=='s_waitcnt':
            self.kind='wait'; self.mods=rest; return
        ops=split_ops(rest)
        if ops:
            last=ops[-1].split(None,1)
            if len(last)>1:
                ops[-1]=last[0]; self.mods=last[1]
        self.opsraw=ops
        regs=[parse_reg(o) for o in ops]
        def R(i): return (regs[i] or []) if i<len(regs) else []
        allfrom=lambda i: [r for j in range(i,len(regs)) for r in (regs[j] or [])]
        if op.startswith('v_mfma'):
            self.kind='mfma'
            self.dst=R(0); self.srcA=R(1); self.srcB=R(2); self.srcC=R(3); self.src=self.srcA+self.srcB+self.srcC
            if '32x32x16' in op or '32x32x8' in op: self.passes=8
            elif '16x16x32' in op or '16x16x16' in op: self.passes=4
            elif '32x32x4' in op: self.passes=16
            elif '16x16x4' in op and 'bf16' in op: self.passes=8
            elif '4x4x4' in op: self.passes=2
            else: raise ValueError("unknown mfma "+op)
        elif op.startswith('v_'):
            self.kind='valu'
            if op=='v_nop': return
            if op.startswith('v_cmpx'): raise ValueError("avoid v_cmpx")
            if op.startswith('v_cmp'):
                self.dst=R(0); self.src=allfrom(1)
            elif op.startswith('v_permlane32_swap') or op.startswith('v_permlane16_swap') or op.startswith('v_swap'):
                self.dst=R(0)+R(1); self.src=R(0)+R(1)
            elif op in('v_add_co_u32','v_sub_co_u32','v_addc_co_u32','v_subb_co_u32','v_add_co_u32_e32','v_addc_co_u32_e32'):
                self.dst=R(0)+R(1); self.src=allfrom(2)
            else:
                self.dst=R(0); self.src=allfrom(1)
                if op.startswith(('v_fmac','v_mac','v_dot2c','v_pk_fmac','v_writelane','v_dot4c')): self.src=self.src+R(0)
                if op.startswith('v_cndmask') and len(ops)==3: self.src=self.src+[('s',106),('s',107)]
                if op.startswith('v_cndmask_b32_e32'):
                    if ('s',106) not in self.src: self.src=self.src+[('s',106),('s',107)]
                if 'sdwa' in op or 'dst_sel' in self.mods:
                    if 'UNUSED_PRESERVE' in self.mods: self.src=self.src+R(0)
        elif op.startswith('ds_'):
            self.kind='ds'
            if op.startswith(('ds_read','ds_bpermute','ds_permute','ds_swizzle')) or '_rtn' in op:
                self.dst=R(0); self.src=allfrom(1)
            else:
                self.src=allfrom(0)
        elif op.startswith(('buffer_','global_')):
            self.kind='vmem'
            md=(' '+self.mods+' ')
            self.lds = ' lds ' in md or op.startswith('global_load_lds')
            if 'load' in op and not self.lds:
                self.dst=R(0); self.src=allfrom(1)
            elif 'load' in op:
                self.src=allfrom(0)+[('m',0)]
            elif 'atomic' in op:
                self.src=allfrom(0)
                if ' sc0 ' in md: self.dst=R(0)
            else:
                self.src=allfrom(0)
                if op.startswith('buffer_store'): self.storedata=R(0)
                else: self.storedata=R(1)
        elif op.startswith('s_'):
            self.kind='salu'
            if op=='s_nop':
                self.nstates=int(ops[0],0)+1; return
            if op.startswith(('s_cbranch','s_branch')):
                self.kind='branch'; self.target=ops[0]
                if 'vcc' in op: self.src=[('s',106),('s',107)]
                if 'exec' in op: self.src=[('x',0),('x',1)]
                return
            if op in('s_barrier','s_endpgm','s_setprio','s_sleep','s_sethalt'): return
            if op.startswith(('s_load','s_buffer_load','s_memtime','s_memrealtime')):
                self.kind='smem'; self.dst=R(0); self.src=allfrom(1); return
            if op.startswith('s_cmp') or op.startswith('s_bitcmp'):
                self.src=allfrom(0); return
            self.dst=R(0); self.src=allfrom(1)
            if 'saveexec' in op: self.dst=self.dst+[('x',0),('x',1)]; self.src+= [('x',0),('x',1)]
            if op.startswith(('s_addk','s_mulk','s_cmov','s_cselect')) :
                if op.startswith(('s_addk','s_mulk','s_cmov')): self.src+=R(0)
        else:
            raise ValueError("cannot parse: "+text)
    def is_real(self): return self.kind not in('empty','label','directive')

def parse_wait(mods):
    d={}
    for k in('vmcnt','lgkmcnt','expcnt'):
        m=re.search(k+r'\((\d+)\)',mods)
        if m: d[k]=int(m.group(1))
    return d

def make_trace(ins, loops=2, take_forward=False, maxlen=4000000, force=None):
    lab={i.label:n for n,i in enumerate(ins) if i.kind=='label'}
    tr=[]; pc=0; cnt={}
    force=force or {}
    while pc<len(ins):
        i=ins[pc]
        tr.append(pc)
        if len(tr)>maxlen: raise RuntimeError("trace too long")
        if i.kind=='salu' and i.op=='s_endpgm': break
        if i.kind=='branch':
            t=lab[i.target]
            if i.op=='s_branch':
                if t<=pc:
                    c=cnt.get(pc,0)
                    if c>=loops+1: break
                    cnt[pc]=c+1
                pc=t; continue
            if t<=pc:
                c=cnt.get(pc,0)
                if c<loops:
                    cnt[pc]=c+1; pc=t; continue
                else:
                    cnt[pc]=0
            else:
                tk = force.get(i.target, take_forward)
                if tk: pc=t; continue
        pc+=1
    return tr

MAXC={'vmcnt':63,'lgkmcnt':15}

def sim_waits(ins, tr, insert=True):
    q={'vmcnt':[], 'lgkmcnt':[]}
    changes=0
    smem_pending=False
    for k in tr:
        i=ins[k]
        if not i.is_real(): continue
        def apply(d):
            for c,n in d.items():
                if c in q:
                    while len(q[c])>n: q[c].pop(0)
        if i.kind=='wait':
            apply(parse_wait(i.mods)); continue
        touched=set(i.src)|set(i.dst)
        need={}
        for c in q:
            L=len(q[c])
            pos=-1
            for p in range(L-1,-1,-1):
                e=q[c][p]
                if e[0] and (e[0] & touched):
                    pos=p; break
            if pos>=0:
                n=L-1-pos
                if c=='lgkmcnt' and any(x[1]=='smem' for x in q[c]): n=0
                need[c]=min(n,MAXC[c])
        for c,n in need.items():
            old=i.pre_wait.get(c)
            if old is None or n<old:
                if not insert:
                    raise RuntimeError(f"missing wait before: {i.text} need {c}({n})")
                i.pre_wait[c]=n; changes+=1
        apply(i.pre_wait)
        if i.kind=='ds':
            q['lgkmcnt'].append((set(i.dst),'ds'))
        elif i.kind=='smem':
            n=1 if (i.op=='s_load_dword' or i.op=='s_buffer_load_dword') else 2
            q['lgkmcnt'].append((set(i.dst),'smem'))
            if n==2: q['lgkmcnt'].append((set(),'smem'))
        elif i.kind=='vmem':
            q['vmcnt'].append((set(i.dst),'vm'))
    return changes

def hazard_need(p, c):
    need=0
    pd=set(p.dst);
    if not pd and not p.storedata and p.kind!='mfma': return 0
    cs=set(c.src); cd=set(c.dst)
    isv=lambda r: r[0] in 'va'
    if p.kind=='valu':
        pv={r for r in pd if isv(r)}
        ps={r for r in pd if r[0]=='s'}
        if c.kind=='mfma' and pv & cs:
            need=max(need, 3 if p.op.startswith('v_dot') else 2)
        if p.op in TRANS and c.kind in('valu',) and c.op not in TRANS and (pv & (cs)):
            need=max(need,1)
        if p.op in TRANS and c.kind in('valu',) and c.op in TRANS and (pv & cs):
            need=max(need,0)
        if p.op.startswith('v_dot'):
            if c.kind in('valu','ds','vmem','mfma'):
                if c.op==p.op:
                    ab=set((parse_reg(c.opsraw[1]) or [])+(parse_reg(c.opsraw[2]) or []))
                    if pv & ab: need=max(need,3)
                elif pv & (cs|cd): need=max(need,3)
        if c.kind=='valu':
            if ps & cs:
                if c.op.startswith(('v_readlane','v_writelane')): need=max(need,4)
                else: need=max(need,2)
            if pv & cs:
                if c.op.startswith(('v_readfirstlane','v_readlane')): need=max(need,1)
                if c.op.startswith('v_permlane') or 'dpp' in c.op or 'row_' in c.mods or 'quad_perm' in c.mods or 'wave_' in c.mods: need=max(need,2)
                if ('sdwa' in p.op or 'dst_sel' in p.mods or ('op_sel' in p.mods and not p.op.startswith('v_pk') ) ): need=max(need,1)
            if (pv & cd) and ('sdwa' in p.op or 'dst_sel' in p.mods): need=max(need,1)
        if c.kind=='vmem' and ps & cs: need=max(need,5)
        if c.kind=='mfma' and ps & cs: need=max(need,2)
    if p.kind=='mfma':
        P=p.passes
        tab=lambda a,b,c_,d: {2:a,4:b,8:c_,16:d}[P]
        if c.kind=='mfma':
            if pd & set(c.srcC):
                if c.srcC==p.dst and c.passes==P: need=max(need,tab(2,0,0,0))
                else: need=max(need,tab(4,6,10,18))
            if pd & (set(c.srcA)|set(c.srcB)): need=max(need,tab(5,8,12,20))
            if (pd & cd) and not (pd & set(c.srcC)):
                if c.passes!=P or c.dst!=p.dst: need=max(need,tab(5,8,12,20))
        elif c.kind in('valu','ds','vmem'):
            if pd & (cs|cd): need=max(need,tab(5,8,12,20))
            if c.kind=='valu' and set(p.srcC) & cd: need=max(need,tab(1,3,7,15))
    if p.kind=='salu' and ('m',0) in pd:
        if c.kind=='vmem' and c.lds: need=max(need,1)
    if p.kind=='vmem' and p.storedata and len(p.storedata)>=3:
        sd=set(p.storedata)
        if sd & cd:
            need=max(need, 2 if c.kind in('valu',) else 1)
    return need

def states_of(i):
    n=i.nstates if i.is_real() else 0
    return n

def sim_hazards(ins, tr):
    changes=0
    hist=[]
    pos=0
    W=24
    for k in tr:
        i=ins[k]
        if not i.is_real(): continue
        pre=(1 if i.pre_wait else 0)+i.pre_nop
        pos+=pre
        if i.kind!='wait':
            worst=0
            for (p,ppos) in reversed(hist):
                dist=pos-ppos
                if dist>=W: break
                nd=hazard_need(p,i)
                if nd>dist: worst=max(worst,nd-dist)
            if worst>0:
                i.pre_nop+=worst; pos+=worst; changes+=1
        pos+=i.nstates
        hist.append((i,pos))
        if len(hist)>64: hist.pop(0)
    return changes

def finalize(lines, name="", variants=({},), loops=2, verbose=True):
    ins=[]
    for l in lines:
        for t in l.split('\n'):
            ins.append(Ins(t))
    traces=[]
    for v in variants:
        traces.append(make_trace(ins,loops=loops,take_forward=False,force=v))
    traces.append(make_trace(ins,loops=loops,take_forward=True))
    traces.append(make_trace(ins,loops=0,take_forward=False))
    for it in range(50):
        ch=0
        for tr in traces: ch+=sim_waits(ins,tr)
        if ch==0: break
    for it in range(50):
        ch=0
        for tr in traces: ch+=sim_hazards(ins,tr)
        if ch==0: break
    out=[]; nn=0; nw=0
    for i in ins:
        if i.pre_wait:
            out.append("    s_waitcnt "+" ".join(f"{c}({n})" for c,n in sorted(i.pre_wait.items(),reverse=True))); nw+=1
        n=i.pre_nop
        while n>0:
            m=min(n,16); out.append(f"    s_nop {m-1}"); n-=m; nn+=1
        if i.kind=='empty' and not i.text.strip(): continue
        out.append(i.text)
    if verbose:
        nreal=sum(1 for i in ins if i.is_real())
        print(f"[{name}] {nreal} instrs, inserted {nw} waits, {nn} nops", file=sys.stderr)
    return out

class Kern:
    def __init__(self, name, grid, block, lds, vgpr=256, agpr=0, sgpr=100):
        self.name=name; self.grid=grid; self.block=block; self.lds=lds
        self.vgpr=vgpr; self.agpr=agpr; self.sgpr=sgpr
        self.lines=[]; self.uid=0; self.variants=[{}]; self.loops=2
    def e(self, s):
        for t in s.split('\n'):
            t=t.rstrip()
            if not t.strip(): continue
            if t.strip().endswith(':') : self.lines.append(t.strip())
            else: self.lines.append('    '+t.strip())
    def c(self, s): self.lines.append('    ; '+s)
    def lab(self, base):
        self.uid+=1; return f"L_{self.name}_{base}_{self.uid}"
    def srd(self, s, base, nbytes):
        self.e(f"s_mov_b32 s{s}, s{base}\ns_mov_b32 s{s+1}, s{base+1}\ns_mov_b32 s{s+2}, {nbytes}\ns_mov_b32 s{s+3}, 0x00020000")
    def text(self):
        body=finalize(self.lines,self.name,variants=self.variants,loops=self.loops)
        kn=self.name+"_kernel" if not self.name.endswith("_kernel") else self.name
        s=f".globl {kn}\n.p2align 8\n.type {kn},@function\n{kn}:\n"+"\n".join(body)+"\n"
        return s
    def desc(self):
        kn=self.name+"_kernel" if not self.name.endswith("_kernel") else self.name
        acc=(self.vgpr+3)//4*4
        tot=acc+self.agpr if self.agpr else self.vgpr
        return f""".amdhsa_kernel {kn}
  .amdhsa_next_free_vgpr {tot}
  .amdhsa_next_free_sgpr {self.sgpr}
  .amdhsa_accum_offset {acc}
  .amdhsa_group_segment_fixed_size 0
  .amdhsa_kernarg_size 80
  .amdhsa_user_sgpr_count 2
  .amdhsa_user_sgpr_kernarg_segment_ptr 1
  .amdhsa_system_sgpr_workgroup_id_x 1
.end_amdhsa_kernel
"""
    def launch_line(self):
        kn=self.name+"_kernel" if not self.name.endswith("_kernel") else self.name
        return f"; @launch kernel={kn} grid=({self.grid},1,1) block=({self.block},1,1) lds={self.lds}"

HEADER = """; Fused pre-LN + softmax MHA (32 heads x 18) + bilinear GLU, gated:  out = x + attn(xn)*silu(ffn(xn))
"""
def build_file(kerns, launches=None, header=HEADER):
    launches=launches or kerns
    s=header
    for k in launches: s+=k.launch_line()+"\n"
    s+='.amdgcn_target "amdgcn-amd-amdhsa--gfx950"\n.text\n'
    for k in kerns: s+=k.text()+"\n"
    s+='.section .rodata,"a"\n.p2align 6\n'
    for k in kerns: s+=k.desc()
    return s

class Prof:
    def __init__(self, k, base, ws_srd_ptr, kid, enabled, nmax=6):
        self.k=k; self.base=base; self.n=0; self.en=enabled; self.kid=kid; self.ptr=ws_srd_ptr; self.nmax=nmax
    def stamp(self, real=False):
        if not self.en: return
        assert self.n<self.nmax
        b=self.base+2*self.n; self.n+=1
        self.k.e(f"s_memtime s[{b}:{b+1}]" if not real else f"s_memrealtime s[{b}:{b+1}]")
        self.k.e("s_waitcnt lgkmcnt(0)")
    def finish(self, s_wave, vt, s_tmp, srd, off):
        if not self.en: return
        e=self.k.e
        e(f"s_lshl_b32 s{s_tmp}, s2, 3\ns_add_u32 s{s_tmp}, s{s_tmp}, s{s_wave}\ns_lshl_b32 s{s_tmp}, s{s_tmp}, 7\ns_add_u32 s{s_tmp}, s{s_tmp}, {off+self.kid*0x100000}")
        e(f"s_mov_b32 s{srd+2}, 0x10000000")
        e(f"v_mov_b32 v{vt}, 0")
        for i in range(self.n):
            b=self.base+2*i
            e(f"v_mov_b32 v{vt+2}, s{b}\nv_mov_b32 v{vt+3}, s{b+1}")
            e(f"buffer_store_dwordx2 v[{vt+2}:{vt+3}], v{vt}, s[{srd}:{srd+3}], s{s_tmp} offen offset:{8*i}")
            e("s_waitcnt vmcnt(0)")
```

```python
from asmlib import *
from layout import *

def gen_k0():
    k=Kern("k0ln", grid=256, block=64, lds=0, vgpr=128, sgpr=48)
    e=k.e
    e("""
    s_cmp_ge_u32 s2, 256
    s_cbranch_scc1 L_k0_end
    s_load_dwordx2 s[4:5], s[0:1], 0
    s_load_dwordx2 s[6:7], s[0:1], 72
    s_waitcnt lgkmcnt(0)
    """)
    k.srd(8,4,2048*1152)
    k.srd(12,6,WS_USED)
    e("""
    v_and_b32 v1, 7, v0
    v_lshrrev_b32 v2, 3, v0
    s_lshl_b32 s3, s2, 3
    v_add_u32 v3, s3, v1
    v_mul_u32_u24 v4, 1152, v3
    v_lshlrev_b32 v5, 4, v2
    v_add_u32 v4, v4, v5
    """)
    for i in range(9):
        e(f"buffer_load_dwordx4 v[{8+4*i}:{11+4*i}], v4, s[8:11], 0 offen offset:{128*i}")
    for j in range(36):
        e(f"v_lshlrev_b32 v{48+2*j}, 16, v{8+j}")
        e(f"v_and_b32 v{49+2*j}, 0xffff0000, v{8+j}")
    e("v_add_f32 v5, v48, v49")
    e("v_add_f32 v6, v50, v51")
    for j in range(2,36):
        e(f"v_add_f32 v{5+(j&1)}, v{5+(j&1)}, v{48+2*j}")
        e(f"v_add_f32 v{5+(j&1)}, v{5+(j&1)}, v{49+2*j}")
    e("v_add_f32 v5, v5, v6")
    def allred(r,t):
        e(f"ds_swizzle_b32 v{t}, v{r} offset:{(8<<10)|0x1f}")
        e(f"v_add_f32 v{r}, v{r}, v{t}")
        e(f"ds_swizzle_b32 v{t}, v{r} offset:{(16<<10)|0x1f}")
        e(f"v_add_f32 v{r}, v{r}, v{t}")
        e(f"v_mov_b32 v{t}, v{r}")
        e(f"v_permlane32_swap_b32 v{r}, v{t}")
        e(f"v_add_f32 v{r}, v{r}, v{t}")
    allred(5,6)
    e(f"v_mul_f32 v5, {f2u(1.0/576):#x}, v5")
    e("v_sub_f32 v7, v48, v5\nv_mul_f32 v6, v7, v7\nv_sub_f32 v7, v49, v5\nv_mul_f32 v120, v7, v7")
    for j in range(1,36):
        e(f"v_sub_f32 v7, v{48+2*j}, v5\nv_sub_f32 v121, v{49+2*j}, v5\nv_fma_f32 v6, v7, v7, v6\nv_fma_f32 v120, v121, v121, v120")
    e("v_add_f32 v6, v6, v120")
    allred(6,7)
    e(f"v_mul_f32 v6, {f2u(1.0/576):#x}, v6")
    e("v_cvt_pk_bf16_f32 v7, v5, v6")
    e("v_lshlrev_b32 v5, 16, v7")
    e("v_and_b32 v6, 0xffff0000, v7")
    e(f"v_add_f32 v6, {f2u(1e-5):#x}, v6")
    e("v_cvt_pk_bf16_f32 v7, v6, v6")
    e("v_lshlrev_b32 v6, 16, v7")
    e("v_sqrt_f32 v6, v6")
    e("v_cvt_pk_bf16_f32 v7, v6, v6")
    e("v_lshlrev_b32 v6, 16, v7")
    e("v_rcp_f32 v6, v6")
    for j in range(36):
        a,b=48+2*j,49+2*j
        e(f"v_sub_f32 v{a}, v{a}, v5\nv_sub_f32 v{b}, v{b}, v5")
        e(f"v_cvt_pk_bf16_f32 v7, v{a}, v{b}")
        e(f"v_lshlrev_b32 v{a}, 16, v7\nv_and_b32 v{b}, 0xffff0000, v7")
        e(f"v_mul_f32 v{a}, v{a}, v6\nv_mul_f32 v{b}, v{b}, v6")
        e(f"v_cvt_pk_bf16_f32 v{8+j}, v{a}, v{b}")
    e("""
    s_lshr_b32 s3, s2, 2
    s_mul_i32 s3, s3, 36864
    s_and_b32 s16, s2, 3
    s_lshl_b32 s16, s16, 7
    s_add_u32 s3, s3, s16
    v_lshrrev_b32 v4, 1, v2
    v_lshlrev_b32 v4, 10, v4
    v_and_b32 v5, 1, v2
    v_lshlrev_b32 v5, 9, v5
    v_add_u32 v4, v4, v5
    v_lshlrev_b32 v5, 4, v1
    v_add_u32 v4, v4, v5
    """)
    e(f"s_add_u32 s3, s3, {XF_OFF}")
    for i in range(9):
        e(f"s_mov_b32 s16, s3") if i==0 else e("s_add_u32 s16, s16, 4096")
        e(f"buffer_store_dwordx4 v[{8+4*i}:{11+4*i}], v4, s[12:15], s16 offen")
    e(f"""
    s_lshl_b32 s3, s2, 5
    v_add_u32 v4, s3, v0
    v_mul_u32_u24 v4, 304, v4
    v_add_u32 v4, 288, v4
    v_mov_b32 v5, 0x80000000
    v_cmp_gt_u32 vcc, 32, v0
    v_cndmask_b32 v4, v5, v4, vcc
    v_mov_b32 v8, 0x3f803f80
    v_mov_b32 v9, 0x3f803f80
    v_mov_b32 v10, 0x3f803f80
    v_mov_b32 v11, 0x3f803f80
    s_mov_b32 s16, {VT_OFF}
    buffer_store_dwordx4 v[8:11], v4, s[12:15], s16 offen
    """)
    e("L_k0_end:\ns_endpgm")
    return k
```

```python
from asmlib import *
from layout import *

SLOT=36864
def xreg(tile,ks):
    idx=(ks*2+tile)*4
    if idx<256: return f"a[{idx}:{idx+3}]"
    b=224+idx-256
    return f"v[{b}:{b+3}]"

G0,U0,G1,U1=0,16,32,48
ARING=64; NR=4; PD=3
V_TRP,V_CUR,V_NXT,V_DF,V_DQ,V_PF,V_XO,V_QKO,V_VO=80,81,82,83,84,85,86,87,88
V_T=96
S_WF,S_WQ,S_PF,S_WS=12,16,20,24
S_W,S_B,S_NF,S_NQ,S_F0,S_Q0=28,29,30,31,32,33
S_PFI,S_PFO,S_PFS,S_PFL=34,35,36,37
S_SLOTN,S_PFSLOT=38,39
S_CNT=40; S_T0,S_T1,S_T2=41,42,43
S_TOT,S_2NF=44,45
S_STF,S_STQ,S_OF,S_OQ=47,48,49,50
S_HA,S_HB=51,52
S_X0,S_X1=53,54
S_H0,S_H1=55,56
S_FT=57
S_QT=58
S_SC=59
S_QA=60; S_QB=61
S_XG=64

def acc(b): return f"v[{b}:{b+15}]"
def afrag(n):
    b=ARING+4*(n%NR); return b

class K1:
    def __init__(self, prof=False):
        self.k=Kern("k1gemm", grid=256, block=256, lds=4*SLOT, vgpr=256, agpr=256, sgpr=100)
        self.P=Prof(self.k, 82, S_WS, 1, prof, nmax=8)
    def rd(self, n, vaddr, unit):
        b=afrag(n)
        return [f"ds_read_b64_tr_b16 v[{b}:{b+1}], v{vaddr} offset:{unit*1024}",
                f"ds_read_b64_tr_b16 v[{b+2}:{b+3}], v{vaddr} offset:{unit*1024+256}"]
    def pf_setup(self):
        return f"""s_cmp_lt_u32 s{S_PFI}, s{S_2NF}
s_cselect_b32 s{S_PF}, s{S_WF}, s{S_WQ}
s_cselect_b32 s{S_PF+1}, s{S_WF+1}, s{S_WQ+1}
s_cselect_b32 s{S_PF+2}, s{S_WF+2}, s{S_WQ+2}
s_cselect_b32 s{S_PFS}, s{S_STF}, s{S_STQ}
s_cselect_b32 s{S_PFO}, s{S_OF}, s{S_OQ}
s_cselect_b64 vcc, -1, 0
s_cselect_b32 s{S_T0}, 0, 64
v_cndmask_b32 v{V_PF}, v{V_DQ}, v{V_DF}, vcc
s_add_u32 s{S_OQ}, s{S_OQ}, s{S_T0}
s_and_b32 s{S_T0}, s{S_PFI}, 1
s_cmp_eq_u32 s{S_T0}, 0
s_cselect_b32 s{S_T0}, s{S_HA}, s{S_HB}
s_add_u32 s{S_OF}, s{S_OF}, s{S_T0}
s_cmp_lt_u32 s{S_PFI}, s{S_TOT}
s_cselect_b32 s{S_PF+2}, s{S_PF+2}, 0
s_add_u32 s{S_PFI}, s{S_PFI}, 1
s_lshl_b32 s{S_T0}, s{S_W}, 10
s_add_u32 s{S_PFL}, s{S_PFSLOT}, s{S_T0}
s_add_u32 s{S_PFSLOT}, s{S_PFSLOT}, {SLOT}
s_cmp_eq_u32 s{S_PFSLOT}, {4*SLOT}
s_cselect_b32 s{S_PFSLOT}, 0, s{S_PFSLOT}""".split('\n')
    def dma(self,i):
        l=[]
        l.append(f"s_mov_b32 m0, s{S_PFL}" if i==0 else "s_add_u32 m0, m0, 4096")
        if i>0: l.append(f"s_add_u32 s{S_PFO}, s{S_PFO}, s{S_PFS}")
        else: l.append("s_nop 0")
        l.append(f"buffer_load_dwordx4 v{V_PF}, s[{S_PF}:{S_PF+3}], s{S_PFO} offen lds")
        return l
    def slot_advance(self):
        return [f"v_mov_b32 v{V_CUR}, v{V_NXT}",
                f"s_add_u32 s{S_SLOTN}, s{S_SLOTN}, {SLOT}",
                f"s_cmp_eq_u32 s{S_SLOTN}, {4*SLOT}",
                f"s_cselect_b32 s{S_SLOTN}, 0, s{S_SLOTN}",
                f"v_add_u32 v{V_NXT}, s{S_SLOTN}, v{V_TRP}"]
    def interval(self, kind, half=0, vm=13, xloads=None, swapped=False):
        e=self.k.e
        mf=[]; fr=[]
        if kind=='F':
            for kl in range(18):
                ks=18*half+kl
                c=lambda a: ("0" if ks==0 else acc(a))
                for (n,(a0,a1)) in ((2*kl,(G0,G1)),(2*kl+1,(U0,U1))):
                    A=f"v[{afrag(n)}:{afrag(n)+3}]"
                    mf.append(f"v_mfma_f32_32x32x16_bf16 {acc(a0)}, {A}, {xreg(0,ks)}, {c(a0)}"); fr.append(n)
                    mf.append(f"v_mfma_f32_32x32x16_bf16 {acc(a1)}, {A}, {xreg(1,ks)}, {c(a1)}"); fr.append(n)
        else:
            for ks in range(36):
                n=ks
                A=f"v[{afrag(n)}:{afrag(n)+3}]"
                c=lambda a: ("0" if ks==0 else acc(a))
                for t,a in ((0,G0),(1,G1)):
                    if swapped: mf.append(f"v_mfma_f32_32x32x16_bf16 {acc(a)}, {xreg(t,ks)}, {A}, {c(a)}")
                    else:       mf.append(f"v_mfma_f32_32x32x16_bf16 {acc(a)}, {A}, {xreg(t,ks)}, {c(a)}")
                    fr.append(n)
        fill=[[] for _ in range(72)]
        pre=self.slot_advance()
        for n in range(36):
            m=n+PD
            if m<36: fill[2*n]+=self.rd(m,V_CUR,m)
            else: fill[2*n]+=self.rd(m,V_NXT,m-36)
        ps=self.pf_setup()
        for i,s in enumerate(ps): fill[1+2*(i//2)].append(s)
        if xloads:
            for i,s in enumerate(xloads): fill[min(i,35)]+=s
        fill[35]+= [f"s_waitcnt vmcnt({vm})","s_barrier"]
        for i in range(9):
            d=self.dma(i)
            fill[36+4*i]+=d[:2]
            fill[37+4*i]+=d[2:]
        for s in pre: e(s)
        for i in range(72):
            e(mf[i])
            for s in fill[i]: e(s)
    def epi_F(self):
        e=self.k.e
        for t,(g,u) in enumerate(((G0,U0),(G1,U1))):
            for j in range(16): e(f"v_mul_f32 v{g+j}, v{g+j}, v{u+j}")
            for j in range(8): e(f"v_cvt_pk_bf16_f32 v{V_T+8*t+j}, v{g+2*j}, v{g+2*j+1}")
            sh=S_H0 if t==0 else S_H1
            for s in range(2):
                b=V_T+8*t+4*s
                e(f"buffer_store_dwordx4 v[{b}:{b+3}], v{V_XO}, s[{S_WS}:{S_WS+3}], s{sh} offen offset:{1024*s}")
        e(f"s_add_u32 s{S_H0}, s{S_H0}, 2048\ns_add_u32 s{S_H1}, s{S_H1}, 2048")
    def epi_QK(self):
        e=self.k.e
        e(f"s_lshl_b32 s{S_T0}, s{S_QT}, 17\ns_add_u32 s{S_T0}, s{S_T0}, s{S_QA}")
        for t,a in enumerate((G0,G1)):
            for j in range(16): e(f"v_mul_f32 v{a+j}, s{S_SC}, v{a+j}")
            for j in range(8): e(f"v_cvt_pk_bf16_f32 v{V_T+8*t+j}, v{a+2*j}, v{a+2*j+1}")
            for j in range(8):
                aa,p=j//2,j%2
                e(f"s_add_u32 s{S_T1}, s{S_T0}, {(4*aa+p)*8192+t*128}")
                e(f"buffer_store_dword v{V_T+8*t+j}, v{V_QKO}, s[{S_WS}:{S_WS+3}], s{S_T1} offen")
    def epi_V(self):
        e=self.k.e
        T=V_T+32
        e(f"""s_sub_u32 s{S_T0}, s{S_QT}, 36
s_lshl_b32 s{S_T0}, s{S_T0}, 5
v_and_b32 v{T}, 31, v{V_XO+3}
v_add_u32 v{T}, s{S_T0}, v{T}
v_mul_u32_u24 v{T+1}, 3641, v{T}
v_lshrrev_b32 v{T+1}, 16, v{T+1}
v_mul_u32_u24 v{T+2}, 18, v{T+1}
v_sub_u32 v{T+2}, v{T}, v{T+2}
v_mul_u32_u24 v{T+1}, {VT_HEAD}, v{T+1}
v_lshlrev_b32 v{T+2}, 4, v{T+2}
v_add_u32 v{T+1}, v{T+1}, v{T+2}
v_add_u32 v{V_VO}, v{T+1}, v{V_XO+4}""")
        for t,a in enumerate((G0,G1)):
            for j in range(8): e(f"v_cvt_pk_bf16_f32 v{V_T+8*t+j}, v{a+2*j}, v{a+2*j+1}")
            for mu in range(2):
                b=V_T+8*t+4*mu
                e(f"s_add_u32 s{S_T1}, s{S_QB}, {(t*2+mu)*608}")
                e(f"buffer_store_dwordx4 v[{b}:{b+3}], v{V_VO}, s[{S_WS}:{S_WS+3}], s{S_T1} offen")
    def gen(self):
        k=self.k; e=k.e
        LANE=V_XO+3
        HH304=V_XO+4
        e(f"""
        s_cmp_ge_u32 s2, 256
        s_cbranch_scc1 L_k1_end
        s_load_dwordx2 s[4:5], s[0:1], 8
        s_load_dwordx2 s[6:7], s[0:1], 32
        s_load_dwordx2 s[8:9], s[0:1], 40
        s_load_dwordx2 s[10:11], s[0:1], 72
        v_lshrrev_b32 v{V_T}, 6, v0
        v_and_b32 v{LANE}, 63, v0
        s_nop 0
        v_readfirstlane_b32 s{S_W}, v{V_T}
        s_waitcnt lgkmcnt(0)
        """)
        self.P.stamp(real=True); self.P.stamp()
        e(f"""
        s_and_b32 s{S_T0}, s{S_W}, 1
        s_cmp_eq_u32 s{S_T0}, 0
        s_cselect_b32 s{S_WF}, s6, s8
        s_cselect_b32 s{S_WF+1}, s7, s9
        s_mov_b32 s{S_WF+2}, {576*9216}
        s_mov_b32 s{S_WF+3}, 0x00020000
        """)
        k.srd(S_WQ,4,576*3456)
        k.srd(S_WS,10,WS_USED)
        e(f"s_mov_b32 s{S_PF+3}, 0x00020000")
        e(f"""
        s_lshr_b32 s{S_B}, s2, 5
        s_and_b32 s{S_T0}, s2, 7          ; x
        s_bfe_u32 s{S_T1}, s2, 0x20003    ; r = (id>>3)&3
        s_cmp_lt_u32 s{S_T1}, 2
        s_cselect_b32 s{S_NF}, 5, 4
        s_mul_i32 s{S_F0}, s{S_T0}, 18
        s_mul_i32 s{S_T2}, s{S_T1}, 5     ; r*5 (r<=2 -> 0,5,10)
        s_cmp_eq_u32 s{S_T1}, 3
        s_cselect_b32 s{S_T2}, 14, s{S_T2}
        s_add_u32 s{S_F0}, s{S_F0}, s{S_T2}
        ; q0x = 7x (x<=6) ; 48 for x=7
        s_mul_i32 s{S_Q0}, s{S_T0}, 7
        s_cmp_eq_u32 s{S_T0}, 7
        s_cselect_b32 s{S_Q0}, 48, s{S_Q0}
        s_cmp_lt_u32 s{S_T0}, 6
        s_cselect_b32 s{S_T2}, 1, 0
        s_cmp_eq_u32 s{S_T1}, 0
        s_cselect_b32 s{S_NQ}, s{S_T2}, 0
        s_cselect_b32 s{S_T2}, 6, 0
        s_add_u32 s{S_Q0}, s{S_Q0}, s{S_T2}
        s_cmp_ge_u32 s{S_T1}, 2
        s_cselect_b32 s{S_NQ}, 3, s{S_NQ}
        s_cmp_eq_u32 s{S_T1}, 3
        s_cselect_b32 s{S_T2}, 3, 0
        s_add_u32 s{S_Q0}, s{S_Q0}, s{S_T2}
        s_lshl_b32 s{S_2NF}, s{S_NF}, 1
        s_add_u32 s{S_TOT}, s{S_2NF}, s{S_NQ}
        s_mov_b32 s{S_STF}, {32*9216}
        s_mov_b32 s{S_STQ}, {64*3456}
        s_mov_b32 s{S_HA}, {288*9216}
        s_mov_b32 s{S_HB}, {(64-288*9216)&0xffffffff}
        ; OF = f0*64 + (w>>1)*16*9216
        s_lshr_b32 s{S_T0}, s{S_W}, 1
        s_mul_i32 s{S_T0}, s{S_T0}, {16*9216}
        s_lshl_b32 s{S_OF}, s{S_F0}, 6
        s_add_u32 s{S_OF}, s{S_OF}, s{S_T0}
        ; OQ = q0*64 + w*16*3456
        s_mul_i32 s{S_T0}, s{S_W}, {16*3456}
        s_lshl_b32 s{S_OQ}, s{S_Q0}, 6
        s_add_u32 s{S_OQ}, s{S_OQ}, s{S_T0}
        s_mov_b32 s{S_PFI}, 0
        s_mov_b32 s{S_PFSLOT}, 0
        s_lshl_b32 s{S_T0}, s{S_B}, 3
        s_lshl_b32 s{S_T1}, s{S_W}, 1
        s_add_u32 s{S_T0}, s{S_T0}, s{S_T1}      ; tg
        s_mul_i32 s{S_X0}, s{S_T0}, 36864
        s_add_u32 s{S_X0}, s{S_X0}, {XF_OFF}
        s_add_u32 s{S_X1}, s{S_X0}, 36864
        s_mul_i32 s{S_H0}, s{S_T0}, {288*1024}
        s_lshl_b32 s{S_T1}, s{S_F0}, 11
        s_add_u32 s{S_H0}, s{S_H0}, s{S_T1}
        s_add_u32 s{S_H0}, s{S_H0}, {HF_OFF}
        s_add_u32 s{S_H1}, s{S_H0}, {288*1024}
        s_lshl_b32 s{S_QA}, s{S_T0}, 7
        s_add_u32 s{S_QA}, s{S_QA}, {QKP_OFF}
        s_mul_i32 s{S_QB}, s{S_T0}, {2*608}
        s_add_u32 s{S_QB}, s{S_QB}, {VT_OFF}
        s_mov_b32 s{S_QT}, s{S_Q0}
        """)
        L=LANE; T=V_T
        e(f"""
        v_lshlrev_b32 v{V_XO}, 4, v{L}
        v_lshrrev_b32 v{T}, 5, v{L}              ; h = l/32
        v_bfe_u32 v{T+1}, v{L}, 2, 2             ; r = (l%16)/4
        v_lshlrev_b32 v{T+2}, 3, v{T}
        v_add_u32 v{T+2}, v{T+2}, v{T+1}
        v_lshlrev_b32 v{T+2}, 6, v{T+2}          ; (8h+r)*64
        v_bfe_u32 v{T+3}, v{L}, 4, 1             ; G%2
        v_lshlrev_b32 v{T+3}, 5, v{T+3}
        v_and_b32 v{T+4}, 3, v{L}
        v_lshlrev_b32 v{T+5}, 3, v{T+4}
        v_add_u32 v{T+2}, v{T+2}, v{T+3}
        v_add_u32 v{V_TRP}, v{T+2}, v{T+5}
        v_mov_b32 v{V_NXT}, v{V_TRP}
        v_lshrrev_b32 v{T+6}, 2, v{L}            ; row = l/4
        v_lshlrev_b32 v{T+7}, 4, v{T+4}          ; piece*16
        v_mul_u32_u24 v{V_DF}, 9216, v{T+6}
        v_add_u32 v{V_DF}, v{V_DF}, v{T+7}
        v_mul_u32_u24 v{V_DQ}, 3456, v{T+6}
        v_add_u32 v{V_DQ}, v{V_DQ}, v{T+7}
        v_and_b32 v{T+8}, 31, v{L}
        v_lshlrev_b32 v{T+8}, 2, v{T+8}
        v_lshlrev_b32 v{T+9}, 14, v{T}           ; hh*2*8192
        v_add_u32 v{V_QKO}, v{T+8}, v{T+9}
        v_mul_u32_u24 v{HH304}, 304, v{T}
        s_mov_b32 s{S_SLOTN}, 0
        """)
        for t in (0,1):
            for g in range(9):
                e(f"s_add_u32 s{S_XG+9*t+g}, s{S_X0 if t==0 else S_X1}, {g*4096}")
        def xl(ks_list):
            out=[]
            for ks in ks_list:
                for t in (0,1):
                    sx=S_XG+9*t+ks//4
                    l=[f"buffer_load_dwordx4 {xreg(t,ks)}, v{V_XO}, s[{S_WS}:{S_WS+3}], s{sx} offen offset:{(ks%4)*1024}"]
                    out.append(l)
            return out
        for s in self.pf_setup(): e(s)
        for i in range(9):
            for s in self.dma(i): e(s)
        for l in xl(range(18)):
            for s in l: e(s)
        for d in range(2):
            for s in self.pf_setup(): e(s)
            for i in range(9):
                for s in self.dma(i): e(s)
        e("s_waitcnt vmcnt(54)\ns_barrier")
        for n in range(PD):
            for s in self.rd(n,V_NXT,n): e(s)
        self.P.stamp()
        self.interval('F',0,vm=45,xloads=xl(range(18,36)))
        self.interval('F',1,vm=45)
        self.epi_F()
        self.P.stamp()
        e(f"s_sub_u32 s{S_CNT}, s{S_NF}, 1")
        e("L_k1_floop:")
        self.interval('F',0,vm=13)
        self.interval('F',1,vm=13)
        self.epi_F()
        e(f"s_sub_u32 s{S_CNT}, s{S_CNT}, 1\ns_cmp_lg_u32 s{S_CNT}, 0\ns_cbranch_scc1 L_k1_floop")
        self.P.stamp()
        e(f"s_mov_b32 s{S_CNT}, s{S_NQ}")
        e("L_k1_qloop:")
        e(f"s_cmp_eq_u32 s{S_CNT}, 0\ns_cbranch_scc1 L_k1_fin")
        e(f"s_cmp_ge_u32 s{S_QT}, 36\ns_cbranch_scc1 L_k1_vt")
        e(f"s_cmp_lt_u32 s{S_QT}, 18\ns_cselect_b32 s{S_SC}, {f2u(QSCALE):#x}, 1.0")
        self.interval('Q',vm=9)
        self.epi_QK()
        e("s_branch L_k1_qnext")
        e("L_k1_vt:")
        self.interval('Q',vm=9,swapped=True)
        self.epi_V()
        e("L_k1_qnext:")
        e(f"s_add_u32 s{S_QT}, s{S_QT}, 1\ns_sub_u32 s{S_CNT}, s{S_CNT}, 1\ns_branch L_k1_qloop")
        e("L_k1_fin:")
        if self.P.en: e("s_waitcnt vmcnt(0)")
        self.P.stamp(); self.P.stamp(real=True)
        self.P.finish(S_W, V_T, S_T0, S_WS, PROF_OFF)
        e("L_k1_end:\ns_endpgm")
        k.variants=[{}, {"L_k1_vt":True}]
        return k

def gen_k1(prof=False): return K1(prof).gen()
```

```python
XF_OFF   = 0x0
XF_SZ    = 64*36*1024
QKP_OFF  = XF_OFF + XF_SZ
QKP_SZ   = 576*8192
VT_HEAD  = 64*2*2*19*16
VT_OFF   = QKP_OFF + QKP_SZ
VT_SZ    = 32*VT_HEAD
HF_OFF   = VT_OFF + VT_SZ
HF_SZ    = 64*288*1024
OF_OFF   = HF_OFF + HF_SZ
OF_SZ    = 64*36*1024
PART_OFF = OF_OFF + OF_SZ
PART_SZ  = 8*2048*576*4
WS_USED  = PART_OFF + PART_SZ
QSCALE = (18 ** -0.5) * 1.4426950408889634
import struct
def f2u(x): return struct.unpack('<I', struct.pack('<f', x))[0]
PROF_OFF = 0x8000000
```

```python
import sys, importlib
sys.path.insert(0,"gen")
from asmlib import *
import k0, k1
import os
PROF=bool(os.environ.get('PROF'))
def main(out, names):
    ks=[]
    for n in names:
        m=importlib.import_module(n)
        f=getattr(m,"gen_"+n)
        ks.append(f(prof=True) if (PROF and 'prof' in f.__code__.co_varnames) else f())
    open(out,"w").write(build_file(ks))
if __name__=="__main__":
    main(sys.argv[1], sys.argv[2:])
```

```python
import sys
sys.path.insert(0,"gen")
from asmlib import *
from lay import *

MF="v_mfma_f32_32x32x16_bf16"
MF16="v_mfma_f32_16x16x32_bf16"
P_X,P_WQKV,P_WO,P_WG,P_WU,P_WD,P_OUT,P_DBG,P_WS=4,6,8,12,14,16,18,20,22
S_WS=24
S_W,S_B,S_X,S_R=28,29,30,31
S_EP=32
S_T0,S_T1,S_T2=34,35,36
S_CLS=37
S_PROF=98
V_LANE,V_FLG,V_XO=208,209,210
V_PA,V_PT=220,222
def r2(b,c='v'): return f"{c}[{b}:{b+1}]"
def r4(b,c='v'): return f"{c}[{b}:{b+3}]"
def r16(b,c='v'): return f"{c}[{b}:{b+15}]"

def spread(fill, ops, lo, hi):
    n=len(ops)
    if n==0: return
    w=hi-lo
    for i,o in enumerate(ops):
        s=lo+(i*w)//n
        if isinstance(o,str): fill[s].append(o)
        else: fill[s].extend(o)

class Base:
    def __init__(self, prof=False, stop=99):
        self.k=Kern("fused", grid=256, block=256, lds=LDS_TOTAL, vgpr=256, agpr=256, sgpr=100)
        self.prof=prof; self.stop=stop
        self.L=LProf(self.k, prof, V_PA, V_PT, S_PROF, LDS_PROF, 0, nmax=64)
        self.e=self.k.e
        self.nlab=0
        import os
        self.fine=bool(os.environ.get('FINE'))
        self.vforce=[{}]
    def lab(self,s):
        self.nlab+=1; return f"L_{s}_{self.nlab}"
    def flag_store(self, ph, vt):
        return [f"v_mov_b32 v{vt}, s{S_EP}", f"v_mov_b32 v{vt+1}, s{S_EP+1}",
                f"s_lshl_b32 s{S_T0}, s2, 7", f"s_add_u32 s{S_T0}, s{S_T0}, {FLAG_OFF+ph*FLAG_PH}",
                f"buffer_store_dwordx2 v[{vt}:{vt+1}], v{V_FLG}, s[{S_WS}:{S_WS+3}], s{S_T0} offen sc1"]
    def poll_ops(self, vaddrs, soff, vt):
        l=[]; old=self.e; self.e=l.append
        self.poll(vaddrs,soff,vt); self.e=old
        return l
    def poll(self, vaddrs, soff, vt):
        nload=len(vaddrs)
        e=self.e; L=self.lab("poll"); D=self.lab("polld")
        e(f"s_mov_b32 s{S_T2}, 0")
        e(f"{L}:")
        for i in range(nload):
            e(f"buffer_load_dwordx2 v[{vt+2*i}:{vt+2*i+1}], v{vaddrs[i]}, s[{S_WS}:{S_WS+3}], s{soff} offen sc1")
        for i in range(nload):
            if i==0: e(f"v_cmp_ne_u64 vcc, s[{S_EP}:{S_EP+1}], v[{vt}:{vt+1}]")
            else:
                e(f"v_cmp_ne_u64 s[96:97], s[{S_EP}:{S_EP+1}], v[{vt+2*i}:{vt+2*i+1}]")
                e(f"s_or_b64 vcc, vcc, s[96:97]")
        e(f"s_add_u32 s{S_T2}, s{S_T2}, 1")
        e(f"s_cbranch_vccz {D}")
        e(f"s_cmp_lt_u32 s{S_T2}, 0x20000")
        e(f"s_cbranch_scc1 {L}")
        e(f"{D}:")
```

```python
XF_OFF   = 0x0
XF_SZ    = 64*36*1024
QK_OFF   = XF_OFF + XF_SZ
QK_OCT   = 2048*16
QK_SZ    = 144*QK_OCT
VT_HEAD  = 64*2*2*19*16
VT_OFF   = QK_OFF + QK_SZ + 4096
VT_SZ    = 32*VT_HEAD
HF_OFF   = VT_OFF + VT_SZ + 4096
HF_SZ    = 64*288*1024
OF_OFF   = HF_OFF + HF_SZ
OF_SZ    = 128*18*1024
PART_OFF = OF_OFF + OF_SZ
PART_CH  = 128*18*1024
PART_SZ  = 8*PART_CH
FLAG_OFF = PART_OFF + PART_SZ
FLAG_PH  = 1024*128
FLAG_SZ  = 8*FLAG_PH
WS_USED  = FLAG_OFF + FLAG_SZ
QSCALE = (18 ** -0.5) * 1.4426950408889634
import struct
def f2u(x): return struct.unpack('<I', struct.pack('<f', x))[0]
PROF_OFF = 0x8000000
LDS_TOTAL = 163840
LDS_PROF = 161792
LDS_WORD = 147456
```

```python
from base import *

S_ST=[40,44,48]
S_WF=52
S_WK,S_OF,S_H0,S_H1,S_QA,S_QB=56,57,58,59,60,61
S_SC=62
S_X0,S_X1=64,65
S_Q0=66
S_Q2=67
S_FD=68
S_FS=69
S_SO=70
S_HS0,S_HS1=71,72
S_DBG,S_XS,S_CODE=84,88,92
V_P1F,V_P1Q,V_P3F,V_P3Q=211,212,213,214
V_QKO,V_HH,V_VO=215,206,207
V_SL=[216,217,218,219]
V_SB=[204,205]
HS=18432; SLOT=36864

S_DA,S_DM=73,74
def _run(e, srd, vpat, so, step, units, lds, tag, mreg=None):
    for u in units:
        if mreg is None: e(f"s_mov_b32 m0, {lds(u)}")
        else: e(f"s_add_u32 m0, s{mreg}, {lds(u)}")
        e(f"s_add_u32 s{S_T1}, s{so}, {u*step}")
        e(f"buffer_load_dwordx4 v{vpat}, s[{srd}:{srd+3}], s{S_T1} offen lds ; tag:{tag}")
def dma_first(self):
    e=self.e
    WQ=S_ST[0]; WG=S_ST[1]; WU=S_ST[2]
    e(f"s_cmp_ge_u32 s{S_CLS}, 2\ns_cbranch_scc1 L_dfs")
    e(f"s_lshl_b32 s{S_SO}, s{S_Q0}, 6")
    _run(e,WQ,V_P3Q,S_SO,8*3456,range(36),lambda u:u*1024,"st0")
    e(f"s_lshl_b32 s{S_SO}, s{S_Q2}, 6")
    _run(e,WQ,V_P1Q,S_SO,16*3456,range(18),lambda u:2*HS+u*1024,"st0")
    e("s_branch L_dfx")
    e("L_dfs:")
    e(f"s_lshl_b32 s{S_SO}, s{S_FS}, 6")
    _run(e,WG,V_P1F,S_SO,16*9216,range(18),lambda u:0*HS+u*1024,"st0")
    _run(e,WU,V_P1F,S_SO,16*9216,range(18),lambda u:1*HS+u*1024,"st0")
    e(f"s_cmp_eq_u32 s{S_CLS}, 3\ns_cbranch_scc1 L_dfx")
    e(f"s_lshl_b32 s{S_SO}, s{S_Q2}, 6")
    _run(e,WQ,V_P1Q,S_SO,16*3456,range(18),lambda u:2*HS+u*1024,"st0")
    e("L_dfx:")
def dma_second(self):
    e=self.e
    WQ=S_ST[0]; WG=S_ST[1]; WU=S_ST[2]
    e(f"s_cmp_ge_u32 s{S_CLS}, 2\ns_cbranch_scc1 L_dma_s")
    e(f"s_lshl_b32 s{S_SO}, s{S_Q0}, 6\ns_mul_i32 s{S_DA}, s{S_W}, {12*8*3456}\ns_add_u32 s{S_SO}, s{S_SO}, s{S_DA}\ns_mul_i32 s{S_DM}, s{S_W}, {12*1024}")
    _run(e,WQ,V_P3Q,S_SO,8*3456,range(36,48),lambda u:(u-36+54)*1024,"st1",S_DM)
    e(f"s_lshl_b32 s{S_SO}, s{S_Q2}, 6\ns_mul_i32 s{S_DA}, s{S_W}, {6*16*3456}\ns_add_u32 s{S_SO}, s{S_SO}, s{S_DA}\ns_mul_i32 s{S_DM}, s{S_W}, {6*1024}")
    _run(e,WQ,V_P1Q,S_SO,16*3456,range(18,24),lambda u:(2+3)*HS+(u-18)*1024,"st1",S_DM)
    e("s_branch L_dma_j0")
    e("L_dma_s:")
    e(f"s_lshl_b32 s{S_SO}, s{S_FS}, 6\ns_mul_i32 s{S_DA}, s{S_W}, {6*16*9216}\ns_add_u32 s{S_SO}, s{S_SO}, s{S_DA}\ns_mul_i32 s{S_DM}, s{S_W}, {6*1024}")
    _run(e,WG,V_P1F,S_SO,16*9216,range(18,24),lambda u:(0+3)*HS+(u-18)*1024,"st1",S_DM)
    _run(e,WU,V_P1F,S_SO,16*9216,range(18,24),lambda u:(1+3)*HS+(u-18)*1024,"st1",S_DM)
    e(f"s_cmp_eq_u32 s{S_CLS}, 3\ns_cbranch_scc1 L_dma_j0")
    e(f"s_lshl_b32 s{S_SO}, s{S_Q2}, 6\ns_mul_i32 s{S_DA}, s{S_W}, {6*16*3456}\ns_add_u32 s{S_SO}, s{S_SO}, s{S_DA}")
    _run(e,WQ,V_P1Q,S_SO,16*3456,range(18,24),lambda u:(2+3)*HS+(u-18)*1024,"st1",S_DM)
    e("L_dma_j0:")
def dma_j0(self):
    e=self.e
    WG=S_ST[1]; WU=S_ST[2]
    e(f"s_lshl_b32 s{S_SO}, s{S_FD}, 6\ns_mul_i32 s{S_DA}, s{S_W}, {48*9216}\ns_add_u32 s{S_SO}, s{S_SO}, s{S_DA}\ns_mul_i32 s{S_DM}, s{S_W}, {12*1024}")
    for u in range(12):
        ks,m,h=u//4,(u>>1)&1,u&1
        e(f"s_add_u32 m0, s{S_DM}, {3*SLOT+u*1024}")
        e(f"s_add_u32 s{S_T1}, s{S_SO}, {(16*ks+8*h)*9216}")
        srd=WG if m==0 else WU
        e(f"buffer_load_dwordx4 v{V_P3F}, s[{srd}:{srd+3}], s{S_T1} offen lds ; tag:d3")

def phase0(self):
    k=self.k; e=self.e
    e(f"""
    s_cmp_ge_u32 s2, 256
    s_cbranch_scc1 L_end
    s_load_dwordx4 s[4:7], s[0:1], 0
    s_load_dwordx2 s[8:9], s[0:1], 16
    s_load_dwordx4 s[12:15], s[0:1], 32
    s_load_dwordx4 s[16:19], s[0:1], 48
    s_load_dwordx4 s[20:23], s[0:1], 64
    v_lshrrev_b32 v1, 6, v0
    v_and_b32 v{V_LANE}, 63, v0
    v_cmp_eq_u32 vcc, 0, v0
    v_mov_b32 v2, 0x80000000
    v_cndmask_b32 v{V_FLG}, v2, 0, vcc
    v_readfirstlane_b32 s{S_W}, v1
    v_lshlrev_b32 v{V_XO}, 4, v{V_LANE}
    v_mov_b32 v128, 0
    v_mov_b32 v129, {LDS_WORD}
    ds_write_b32 v129, v128
    ds_write_b32 v129, v128 offset:4
    ds_write_b32 v129, v128 offset:8
    s_lshr_b32 s{S_B}, s2, 5
    s_and_b32 s{S_X}, s2, 7
    s_bfe_u32 s{S_R}, s2, 0x20003
    """)
    k.srd(S_WS,P_WS,WS_USED if not self.prof else 0x10000000)
    k.srd(S_XS,P_X,2048*1152)
    k.srd(S_DBG,P_DBG,256)
    self.L.init(S_W,S_T0); self.L.estamp(real=True); self.L.estamp()
    e(f"""
    s_cmp_lg_u32 s2, 0
    s_cbranch_scc1 L_noep
    s_memrealtime s[{S_EP}:{S_EP+1}]
    s_waitcnt lgkmcnt(0)
    s_or_b32 s{S_EP}, s{S_EP}, 1
    v_mov_b32 v2, s{S_EP}
    v_mov_b32 v3, s{S_EP+1}
    buffer_store_dwordx2 v[2:3], v{V_FLG}, s[{S_DBG}:{S_DBG+3}], 0 offen sc1
    L_noep:
    """)
    L=V_LANE
    e(f"s_cmp_eq_u32 s{S_W}, 3\ns_cbranch_scc1 L_skipx")
    e(f"""
    v_and_b32 v1, 7, v{L}
    v_lshrrev_b32 v2, 3, v{L}
    s_lshl_b32 s{S_T0}, s2, 3
    v_add_u32 v3, s{S_T0}, v1
    v_mul_u32_u24 v4, 1152, v3
    v_lshlrev_b32 v5, 4, v2
    v_add_u32 v4, v4, v5
    """)
    for g in range(3):
        e(f"s_add_u32 s{S_T0}, s{S_W}, {g}")
        e(f"s_cmp_ge_u32 s{S_T0}, 3\ns_cselect_b32 s{S_T1}, 3, 0\ns_sub_u32 s{S_T0}, s{S_T0}, s{S_T1}")
        e(f"s_mul_i32 s{S_T0}, s{S_T0}, 384")
        for m in range(3):
            i=3*g+m
            e(f"buffer_load_dwordx4 v[{8+4*i}:{11+4*i}], v4, s[{S_XS}:{S_XS+3}], s{S_T0} offen offset:{128*m}")
    e(f"""
    s_getpc_b64 s[{S_CODE}:{S_CODE+1}]
    L_pcref:
    s_mov_b32 s{S_CODE+2}, L_codeend-L_pcref
    s_mov_b32 s{S_CODE+3}, 0x00020000
    s_lshr_b32 s{S_T0}, s2, 3
    s_mul_i32 s{S_T0}, s{S_T0}, 3
    s_add_u32 s{S_T0}, s{S_T0}, s{S_W}
    s_lshl_b32 s{S_T0}, s{S_T0}, 10
    buffer_load_dwordx4 v[124:127], v{V_XO}, s[{S_CODE}:{S_CODE+3}], s{S_T0} offen
    s_add_u32 s{S_T0}, s{S_T0}, {96*1024}
    buffer_load_dwordx4 v[132:135], v{V_XO}, s[{S_CODE}:{S_CODE+3}], s{S_T0} offen
    L_skipx:
    s_waitcnt lgkmcnt(0)
    s_barrier
    """)
    self.L.estamp()
    e(f"""
    s_mul_i32 s{S_T0}, s{S_X}, 18
    s_lshl_b32 s{S_T1}, s{S_R}, 2
    s_add_u32 s{S_FD}, s{S_T0}, s{S_T1}
    s_add_u32 s{S_FS}, s{S_T0}, s{S_R}
    s_add_u32 s{S_FS}, s{S_FS}, 16
    ; class: r=2 -> 0 ; r=3 -> x<4?0:1 ; r=0 -> x<6?2:3 ; r=1 -> 3
    s_cmp_lt_u32 s{S_X}, 4
    s_cselect_b32 s{S_T0}, 0, 1
    s_cmp_eq_u32 s{S_R}, 2
    s_cselect_b32 s{S_T0}, 0, s{S_T0}
    s_cmp_lt_u32 s{S_X}, 6
    s_cselect_b32 s{S_T1}, 2, 3
    s_cmp_eq_u32 s{S_R}, 1
    s_cselect_b32 s{S_T1}, 3, s{S_T1}
    s_cmp_ge_u32 s{S_R}, 2
    s_cselect_b32 s{S_CLS}, s{S_T0}, s{S_T1}
    s_cmp_eq_u32 s{S_R}, 3
    s_cselect_b32 s{S_T0}, 8, 0
    s_add_u32 s{S_T0}, s{S_T0}, s{S_X}
    s_lshl_b32 s{S_Q0}, s{S_T0}, 1
    s_cmp_eq_u32 s{S_CLS}, 1
    s_cselect_b32 s{S_T1}, 12, 0
    s_cselect_b32 s{S_T2}, 32, 24
    s_add_u32 s{S_Q0}, s{S_Q0}, s{S_T1}
    s_add_u32 s{S_Q2}, s{S_T0}, s{S_T2}
    s_add_u32 s{S_T0}, s{S_X}, 48
    s_cmp_eq_u32 s{S_CLS}, 2
    s_cselect_b32 s{S_Q2}, s{S_T0}, s{S_Q2}
    s_cmp_lt_u32 s{S_W}, 2
    s_cselect_b32 s{S_WF}, s{P_WG}, s{P_WU}
    s_cselect_b32 s{S_WF+1}, s{P_WG+1}, s{P_WU+1}
    s_mov_b32 s{S_WF+2}, {576*9216}
    s_mov_b32 s{S_WF+3}, 0x00020000
    s_lshl_b32 s{S_WK}, s{S_W}, 10
    """)
    k.srd(S_ST[0],P_WQKV,576*3456); k.srd(S_ST[1],P_WG,576*9216); k.srd(S_ST[2],P_WU,576*9216)
    e(f"""
    v_lshrrev_b32 v1, 2, v{L}               ; row 0..15
    v_and_b32 v2, 3, v{L}
    v_lshlrev_b32 v2, 4, v2                 ; piece*16
    v_mul_u32_u24 v{V_P1F}, 9216, v1
    v_add_u32 v{V_P1F}, v{V_P1F}, v2
    v_mul_u32_u24 v{V_P1Q}, 3456, v1
    v_add_u32 v{V_P1Q}, v{V_P1Q}, v2
    v_and_b32 v1, 7, v1                     ; row 0..7
    v_lshrrev_b32 v3, 5, v{L}
    v_lshlrev_b32 v3, 6, v3
    v_add_u32 v2, v2, v3
    v_mul_u32_u24 v{V_P3F}, 9216, v1
    v_add_u32 v{V_P3F}, v{V_P3F}, v2
    v_mul_u32_u24 v{V_P3Q}, 3456, v1
    v_add_u32 v{V_P3Q}, v{V_P3Q}, v2
    s_lshl_b32 s{S_OF}, s{S_FD}, 6
    s_and_b32 s{S_T0}, s{S_W}, 1
    s_mul_i32 s{S_T0}, s{S_T0}, {8*9216}
    s_add_u32 s{S_OF}, s{S_OF}, s{S_T0}
    s_add_u32 s{S_OF}, s{S_OF}, {144*9216}
    """)
    e(f"s_cmp_eq_u32 s{S_W}, 3\ns_cbranch_scc1 L_dma")
    U=48
    for j in range(36):
        e(f"v_lshlrev_b32 v{U+2*j}, 16, v{8+j}")
        e(f"v_and_b32 v{U+2*j+1}, 0xffff0000, v{8+j}")
    self.L.estamp()
    e(f"buffer_load_dwordx2 v[120:121], v128, s[{S_DBG}:{S_DBG+3}], 0 offen sc1")
    e(f"v_pk_add_f32 v[4:5], v[{U}:{U+1}], v[{U+2}:{U+3}]")
    e(f"v_pk_add_f32 v[6:7], v[{U+4}:{U+5}], v[{U+6}:{U+7}]")
    for j in range(4,36):
        a=4+2*(j&1)
        e(f"v_pk_add_f32 v[{a}:{a+1}], v[{a}:{a+1}], v[{U+2*j}:{U+2*j+1}]")
    e("v_pk_add_f32 v[4:5], v[4:5], v[6:7]\nv_add_f32 v4, v4, v5")
    def allred(r,t):
        e(f"v_add_f32_dpp v{r}, v{r}, v{r} row_ror:8 row_mask:0xf bank_mask:0xf")
        e(f"v_mov_b32 v{t}, v{r}")
        e(f"v_permlane16_swap_b32 v{r}, v{t}")
        e(f"v_add_f32 v{r}, v{r}, v{t}")
        e(f"v_mov_b32 v{t}, v{r}")
        e(f"v_permlane32_swap_b32 v{r}, v{t}")
        e(f"v_add_f32 v{r}, v{r}, v{t}")
    allred(4,5)
    e(f"v_mul_f32 v4, {f2u(1.0/576):#x}, v4")
    PM="op_sel_hi:[1,0] neg_lo:[0,1] neg_hi:[0,1]"
    e(f"v_pk_add_f32 v[44:45], v[{U}:{U+1}], v[4:5] {PM}")
    e(f"v_pk_mul_f32 v[6:7], v[44:45], v[44:45]")
    e(f"v_pk_add_f32 v[46:47], v[{U+2}:{U+3}], v[4:5] {PM}")
    e(f"v_pk_mul_f32 v[122:123], v[46:47], v[46:47]")
    for j in range(2,36):
        t=44+2*(j&1); a=6 if (j&1)==0 else 122
        e(f"v_pk_add_f32 v[{t}:{t+1}], v[{U+2*j}:{U+2*j+1}], v[4:5] {PM}")
        e(f"v_pk_fma_f32 v[{a}:{a+1}], v[{t}:{t+1}], v[{t}:{t+1}], v[{a}:{a+1}]")
    e("v_pk_add_f32 v[6:7], v[6:7], v[122:123]\nv_add_f32 v6, v6, v7")
    allred(6,7)
    e(f"v_mul_f32 v6, {f2u(1.0/576):#x}, v6")
    e("v_cvt_pk_bf16_f32 v7, v4, v6")
    e("v_lshlrev_b32 v4, 16, v7")
    e("v_and_b32 v6, 0xffff0000, v7")
    e(f"v_add_f32 v6, {f2u(1e-5):#x}, v6")
    e("v_cvt_pk_bf16_f32 v7, v6, v6")
    e("v_lshlrev_b32 v6, 16, v7")
    e("v_sqrt_f32 v6, v6")
    e("v_cvt_pk_bf16_f32 v7, v6, v6")
    e("v_lshlrev_b32 v6, 16, v7")
    e("v_rcp_f32 v6, v6")
    for j in range(12):
        a=U+2*j
        e(f"v_pk_add_f32 v[{a}:{a+1}], v[{a}:{a+1}], v[4:5] {PM}")
        e(f"v_cvt_pk_bf16_f32 v7, v{a}, v{a+1}")
        e(f"v_lshlrev_b32 v{a}, 16, v7\nv_and_b32 v{a+1}, 0xffff0000, v7")
        e(f"v_pk_mul_f32 v[{a}:{a+1}], v[{a}:{a+1}], v[6:7] op_sel_hi:[1,0]")
        e(f"v_cvt_pk_bf16_f32 v{8+j}, v{a}, v{a+1}")
    e(f"""
    s_lshr_b32 s{S_T0}, s2, 2
    s_mul_i32 s{S_T0}, s{S_T0}, 36864
    s_and_b32 s{S_T1}, s2, 3
    s_lshl_b32 s{S_T1}, s{S_T1}, 7
    s_add_u32 s{S_T0}, s{S_T0}, s{S_T1}
    s_mul_i32 s{S_T1}, s{S_W}, {3*4096}
    s_add_u32 s{S_T0}, s{S_T0}, s{S_T1}
    s_add_u32 s{S_T0}, s{S_T0}, {XF_OFF}
    v_lshrrev_b32 v2, 3, v{L}
    v_and_b32 v1, 7, v{L}
    v_lshrrev_b32 v4, 1, v2
    v_lshlrev_b32 v4, 10, v4
    v_and_b32 v5, 1, v2
    v_lshlrev_b32 v5, 9, v5
    v_add_u32 v4, v4, v5
    v_lshlrev_b32 v5, 4, v1
    v_add_u32 v4, v4, v5
    """)
    for m in range(3):
        e(f"buffer_store_dwordx4 v[{8+4*m}:{11+4*m}], v4, s[{S_WS}:{S_WS+3}], s{S_T0} offen sc1 ; tag:xs")
        if m<2: e(f"s_add_u32 s{S_T0}, s{S_T0}, 4096")
    self.L.estamp()
    dma_second(self)
    def get_epoch(tagl):
        e(f"""
        v_readfirstlane_b32 s{S_EP}, v120
        v_readfirstlane_b32 s{S_EP+1}, v121
        s_cmp_lg_u32 s{S_EP}, 0
        s_cbranch_scc1 L_gotep{tagl}
        s_mov_b32 s{S_T2}, 0
        L_eppoll{tagl}:
        buffer_load_dwordx2 v[120:121], v128, s[{S_DBG}:{S_DBG+3}], 0 offen sc1
        v_readfirstlane_b32 s{S_EP}, v120
        v_readfirstlane_b32 s{S_EP+1}, v121
        s_add_u32 s{S_T2}, s{S_T2}, 1
        s_cmp_lg_u32 s{S_EP}, 0
        s_cbranch_scc1 L_gotep{tagl}
        s_cmp_lt_u32 s{S_T2}, 0x20000
        s_cbranch_scc1 L_eppoll{tagl}
        L_gotep{tagl}:
        """)
    get_epoch("a")
    e(f"""
    v_mov_b32 v4, s{S_EP}
    v_mov_b32 v5, s{S_EP+1}
    v_cmp_eq_u32 vcc, 0, v{L}
    v_cndmask_b32 v7, 0, 1, vcc
    ds_add_rtn_u32 v6, v129, v7 offset:4 ; need:xs
    s_lshl_b32 s{S_T0}, s2, 7
    s_add_u32 s{S_T0}, s{S_T0}, {FLAG_OFF}
    s_waitcnt lgkmcnt(0)
    v_readfirstlane_b32 s{S_T1}, v6
    v_mov_b32 v6, 0x80000000
    s_cmp_eq_u32 s{S_T1}, 2
    s_cbranch_scc0 L_noflag
    v_cndmask_b32 v6, v6, 0, vcc
    buffer_store_dwordx2 v[4:5], v6, s[{S_WS}:{S_WS+3}], s{S_T0} offen sc1
    L_noflag:
    """)
    self.L.estamp()
    dma_j0(self)
    e(f"""
    s_cmp_eq_u32 s{S_W}, 2
    s_cselect_b32 s{S_T2}, 1, 0
    v_lshrrev_b32 v4, 1, v{L}
    v_mul_u32_u24 v4, 9216, v4
    v_and_b32 v5, 1, v{L}
    v_lshl_add_u32 v4, v5, 7, v4
    s_mul_i32 s{S_T0}, s{S_B}, 72
    s_and_b32 s{S_T1}, s{S_W}, 1
    s_mul_i32 s{S_T1}, s{S_T1}, 36
    s_add_u32 s{S_T0}, s{S_T0}, s{S_T1}
    s_mul_i32 s{S_T0}, s{S_T0}, 9216
    s_lshl_b32 s{S_T1}, s{S_FD}, 6
    s_add_u32 s{S_T0}, s{S_T0}, s{S_T1}
    buffer_load_dword v8, v4, s[{S_WF}:{S_WF+3}], s{S_T0} offen
    s_add_u32 s{S_T0}, s{S_T0}, {32*9216}
    buffer_load_dword v9, v4, s[{S_WF}:{S_WF+3}], s{S_T0} offen
    s_cmp_lg_u32 s{S_W}, 2
    s_cbranch_scc1 L_notch2
    s_add_u32 s{S_T0}, s{S_T0}, {4*9216}
    buffer_load_dword v10, v4, s[{S_WF}:{S_WF+3}], s{S_T0} offen
    s_add_u32 s{S_T0}, s{S_T0}, {32*9216}
    buffer_load_dword v11, v4, s[{S_WF}:{S_WF+3}], s{S_T0} offen
    L_notch2:
    """)
    e("s_branch L_ldsw0")
    e("L_dma:")
    dma_first(self)
    self.L.estamp()
    e(f"buffer_load_dwordx2 v[120:121], v128, s[{S_DBG}:{S_DBG+3}], 0 offen sc1")
    e(f"""
    s_lshl_b32 s{S_T0}, s2, 5
    v_add_u32 v4, s{S_T0}, v{L}
    v_mul_u32_u24 v4, 304, v4
    v_add_u32 v4, 288, v4
    v_mov_b32 v5, 0x80000000
    v_cmp_gt_u32 vcc, 32, v{L}
    v_cndmask_b32 v4, v5, v4, vcc
    v_mov_b32 v24, 0x3f803f80
    v_mov_b32 v25, 0x3f803f80
    v_mov_b32 v26, 0x3f803f80
    v_mov_b32 v27, 0x3f803f80
    s_mov_b32 s{S_T0}, {VT_OFF}
    buffer_store_dwordx4 v[24:27], v4, s[{S_WS}:{S_WS+3}], s{S_T0} offen sc1 ; tag:q
    """)
    get_epoch("b")
    self.L.estamp()
    e(f"""
    s_mov_b32 s{S_T2}, 0
    L_ldsc:
    ds_read_b32 v130, v129 offset:4
    s_waitcnt lgkmcnt(0)
    v_readfirstlane_b32 s{S_T0}, v130
    s_add_u32 s{S_T2}, s{S_T2}, 1
    s_cmp_ge_u32 s{S_T0}, 3
    s_cbranch_scc1 L_ldscx
    s_sleep 1
    s_cmp_lt_u32 s{S_T2}, 0x400000
    s_cbranch_scc1 L_ldsc
    L_ldscx:
    """)
    self.L.estamp()
    e(f"v_and_b32 v30, 31, v{L}\nv_lshlrev_b32 v30, 7, v30")
    e(f"s_lshl_b32 s{S_T1}, s{S_B}, 12\ns_add_u32 s{S_T1}, s{S_T1}, {FLAG_OFF}")
    self.poll([30], S_T1, 32)
    e(f"v_mov_b32 v128, 1\nds_write_b32 v129, v128")
    e("s_branch L_join")
    e(f"""
    L_ldsw0:
    s_mov_b32 s{S_T2}, 0
    L_ldsw:
    ds_read_b32 v130, v129
    s_waitcnt lgkmcnt(0)
    v_readfirstlane_b32 s{S_T0}, v130
    s_add_u32 s{S_T2}, s{S_T2}, 1
    s_cmp_lg_u32 s{S_T0}, 0
    s_cbranch_scc1 L_join
    s_sleep 1
    s_cmp_lt_u32 s{S_T2}, 0x400000
    s_cbranch_scc1 L_ldsw
    L_join:
    """)
    self.L.estamp()
```

```python
from base import *
from p0 import *

S0,S1,X3=0,64,128
ARING=160; NR=4; PD=3
ET=176
def xreg(tile,ks):
    idx=(ks*2+tile)*4
    if idx<256: return f"a[{idx}:{idx+3}]"
    b=224+idx-256
    return f"v[{b}:{b+3}]"
def af(n): b=ARING+4*(n%NR); return b
def rd(n, vaddr, off):
    b=af(n)
    return [f"ds_read_b64_tr_b16 v[{b}:{b+1}], v{vaddr} offset:{off}",
            f"ds_read_b64_tr_b16 v[{b+2}:{b+3}], v{vaddr} offset:{off+256}"]

def epi_F(G0,U0,G1,U1,sh0=S_H0,sh1=S_H1,adv=True):
    ops=[]
    for t,(g,u) in enumerate(((G0,U0),(G1,U1))):
        T=ET+8*t
        for j in range(8):
            ops.append(f"v_mul_f32 v{g+2*j}, v{g+2*j}, v{u+2*j}")
            ops.append(f"v_mul_f32 v{g+2*j+1}, v{g+2*j+1}, v{u+2*j+1}")
        for j in range(8): ops.append(f"v_cvt_pk_bf16_f32 v{T+j}, v{g+2*j}, v{g+2*j+1}")
        sh=sh0 if t==0 else sh1
        for s in range(2):
            b=T+4*s
            ops.append(f"buffer_store_dwordx4 v[{b}:{b+3}], v{V_XO}, s[{S_WS}:{S_WS+3}], s{sh} offen offset:{1024*s} sc1 ; tag:h")
    if adv:
        ops.append(f"s_add_u32 s{sh0}, s{sh0}, 2048")
        ops.append(f"s_add_u32 s{sh1}, s{sh1}, 2048")
    return ops
def epi_set(S): return epi_F(S,S+16,S+32,S+48)
def epi_QK(a0,a1,sq,dq):
    ops=[]
    ops.append([f"s_add_u32 s{S_T0}, s{sq}, {dq}", f"s_cmp_lt_u32 s{S_T0}, 18",
                f"s_cselect_b32 s{S_SC}, {f2u(QSCALE):#x}, 1.0", f"s_mov_b32 s{S_SC+1}, s{S_SC}"])
    ops.append([f"s_lshl_b32 s{S_T0}, s{S_T0}, 17", f"s_add_u32 s{S_T1}, s{S_T0}, s{S_QA}"])
    for t,a in enumerate((a0,a1)):
        T=ET+8*t
        for j in range(16): ops.append(f"v_mul_f32 v{a+j}, s{S_SC}, v{a+j}")
        for j in range(8): ops.append(f"v_cvt_pk_bf16_f32 v{T+j}, v{a+2*j}, v{a+2*j+1}")
        for m in range(2):
            b=T+4*m
            ops.append(f"v_permlane32_swap_b32 v{b}, v{b+2}")
            ops.append(f"v_permlane32_swap_b32 v{b+1}, v{b+3}")
            ops.append([f"s_add_u32 s{S_T0}, s{S_T1}, {m*2*QK_OCT+t*512}",
                        f"buffer_store_dwordx4 v[{b}:{b+3}], v{V_QKO}, s[{S_WS}:{S_WS+3}], s{S_T0} offen sc1 ; tag:q"])
    return ops
def epi_V(a0,a1,sq,dq):
    ops=[]
    T=ET+16
    ops.append([f"s_add_u32 s{S_T0}, s{sq}, {dq}", f"s_sub_u32 s{S_T0}, s{S_T0}, 36", f"s_lshl_b32 s{S_T0}, s{S_T0}, 5"])
    ops+= [f"v_and_b32 v{T}, 31, v{V_LANE}",
           f"v_add_u32 v{T}, s{S_T0}, v{T}",
           f"v_mul_u32_u24 v{T+1}, 3641, v{T}",
           f"v_lshrrev_b32 v{T+1}, 16, v{T+1}",
           f"v_mul_u32_u24 v{T+2}, 18, v{T+1}",
           f"v_sub_u32 v{T+2}, v{T}, v{T+2}",
           f"v_mul_u32_u24 v{T+1}, {VT_HEAD}, v{T+1}",
           f"v_lshlrev_b32 v{T+2}, 4, v{T+2}",
           f"v_add_u32 v{T+1}, v{T+1}, v{T+2}",
           f"v_add_u32 v{V_VO}, v{T+1}, v{V_HH}"]
    for t,a in enumerate((a0,a1)):
        B=ET+8*t
        for j in range(8): ops.append(f"v_cvt_pk_bf16_f32 v{B+j}, v{a+2*j}, v{a+2*j+1}")
        for mu in range(2):
            b=B+4*mu
            ops.append([f"s_add_u32 s{S_T1}, s{S_QB}, {(t*2+mu)*608}",
                        f"buffer_store_dwordx4 v[{b}:{b+3}], v{V_VO}, s[{S_WS}:{S_WS+3}], s{S_T1} offen sc1 ; tag:q"])
    return ops

def fdma(slot, tag, last=False):
    l=[]
    for i in range(9):
        b=[f"buffer_load_dwordx4 v{V_P3F}, s[{S_WF}:{S_WF+3}], s{S_OF} offen lds ; tag:{tag}",
           f"s_add_u32 s{S_OF}, s{S_OF}, {16*9216}"]
        if last and i==8: b.append(f"s_sub_u32 s{S_OF}, s{S_OF}, {576*9216-128}")
        l.append(([f"s_add_u32 m0, s{S_WK}, {slot*SLOT+4096*i}"],b))
    return l

def xload(ks):
    out=[]
    for t in (0,1):
        sx=S_X0 if t==0 else S_X1
        out.append(f"buffer_load_dwordx4 {xreg(t,ks)}, v{V_XO}, s[{S_WS}:{S_WS+3}], s{sx} offen offset:{(ks%4)*1024} sc1")
    if ks%4==3: out+= [f"s_add_u32 s{S_X0}, s{S_X0}, 4096", f"s_add_u32 s{S_X1}, s{S_X1}, 4096"]
    return out

def foff(n):
    part,r=divmod(n,18); ks,m=divmod(r,2)
    return ks*4096+m*2048+part*512

def interval(self, iv, slot, nslot, epiA=None, epiB=None, dmas=(), need=None, after_bar=None, pre_next=True, bar=True, extra=None):
    e=self.e
    mf=[]
    for part,S in enumerate((S0,S1)):
        G0,U0,G1,U1=S,S+16,S+32,S+48
        for kl in range(9):
            ks=9*iv+kl
            c=lambda a: ("0" if ks==0 else r16(a))
            for m,(a0,a1) in enumerate(((G0,G1),(U0,U1))):
                n=18*part+2*kl+m
                A=r4(af(n))
                mf.append(f"{MF} {r16(a0)}, {A}, {xreg(0,ks)}, {c(a0)}")
                mf.append(f"{MF} {r16(a1)}, {A}, {xreg(1,ks)}, {c(a1)}")
    fill=[[] for _ in range(72)]
    if bar:
        fill[0]+=[f"s_barrier" + (f" ; need:{need}" if need else "")]
        if after_bar: fill[0]+=after_bar
    for n in range(36):
        m=n+PD
        if m<36: fill[2*n]+=rd(m,V_SL[slot],foff(m))
        elif pre_next: fill[2*n]+=rd(m,V_SL[nslot],foff(m-36))
    dl=[d for g in dmas for d in g]
    if dl:
        span=62
        for i,(a,b) in enumerate(dl):
            p=2+(i*span)//len(dl)
            fill[p]+=a; fill[p+1]+=b
    if epiA: spread(fill, epiA, 3, 35)
    if epiB: spread(fill, epiB, 39, 71)
    if extra:
        for (ops,lo,hi) in extra: spread(fill, ops, lo, hi)
    if self.fine:
        fill[35]+=self.L.stamp()
        fill[71]+=self.L.stamp()
    for i in range(72):
        e(mf[i])
        for s in fill[i]: e(s)

def startup(self, cls):
    e=self.e
    kinds={0:"KKK",1:"VVV",2:"GUV",3:"GU"}[cls]
    NS=len(kinds)
    accs=[(64,80),(96,112),(X3,X3+16)]
    D=8
    mf=[]
    for ks in range(36):
        for s in range(NS):
            n=NS*ks+s
            A=r4(af(n))
            for t in (0,1):
                a=accs[s][t]
                c="0" if ks==0 else r16(a)
                if kinds[s]=='V': mf.append(f"{MF} {r16(a)}, {xreg(t,ks)}, {A}, {c}")
                else:             mf.append(f"{MF} {r16(a)}, {A}, {xreg(t,ks)}, {c}")
    NM=len(mf); per=2*NS
    fill=[[] for _ in range(NM)]
    def frd(n):
        ks,s=divmod(n,NS)
        hf,kl=divmod(ks,18)
        if cls<2 and s<2:
            return rd(n,V_SL[0] if hf==0 else V_VO2,kl*2048+s*512)
        return rd(n,V_SB[hf],s*HS+kl*1024)
    NF=36*NS
    for n in range(NF):
        m=n+PD
        if m<NF: fill[2*n]+=frd(m)
        elif True: fill[2*n]+=rd(m,V_SL[3],foff(m-NF))
    assert NF%NR==0
    for ks in range(36-D):
        l=xload(ks+D)
        fill[per*ks+1]+=l[:1]; fill[per*ks+3]+=l[1:]
    mid=2*(NS*18-PD)-1
    fill[mid]+=["s_barrier"]
    mid2=per*18-1
    fill[mid2]+=["s_barrier"]
    d=fdma(0,"d0")
    w=(NM-mid2-8)//9
    for i,(a,b) in enumerate(d):
        fill[mid2+1+w*i]+=a; fill[mid2+2+w*i]+=b
    for ks in range(D):
        for s in xload(ks): e(s)
    e("s_barrier ; need:st0")
    for n in range(PD):
        for s in frd(n): e(s)
    fill[mid2]+=self.L.stamp()
    for i in range(NM):
        e(mf[i])
        for s in fill[i]: e(s)
    self.L.estamp()
    if cls==0:
        epA=epi_QK(accs[0][0],accs[0][1],S_Q0,0)+epi_QK(accs[1][0],accs[1][1],S_Q0,1); epB=epi_QK(accs[2][0],accs[2][1],S_Q2,0)
    elif cls==1:
        epA=epi_V(accs[0][0],accs[0][1],S_Q0,0)+epi_V(accs[1][0],accs[1][1],S_Q0,1); epB=epi_V(accs[2][0],accs[2][1],S_Q2,0)
    elif cls==2:
        epA=epi_F(accs[0][0],accs[1][0],accs[0][1],accs[1][1],S_HS0,S_HS1,False); epB=epi_V(accs[2][0],accs[2][1],S_Q2,0)
    else:
        epA=epi_F(accs[0][0],accs[1][0],accs[0][1],accs[1][1],S_HS0,S_HS1,False); epB=None
    return epA,epB

V_VO2=203

def phase1(self):
    k=self.k; e=self.e; L=V_LANE; T=ET
    e(f"""
    v_lshrrev_b32 v{T}, 5, v{L}              ; h
    v_bfe_u32 v{T+1}, v{L}, 2, 2             ; r
    v_lshlrev_b32 v{T+1}, 6, v{T+1}          ; r*64
    v_bfe_u32 v{T+3}, v{L}, 4, 1
    v_lshlrev_b32 v{T+3}, 5, v{T+3}
    v_and_b32 v{T+4}, 3, v{L}
    v_lshlrev_b32 v{T+5}, 3, v{T+4}
    v_add_u32 v{T+1}, v{T+1}, v{T+3}
    v_add_u32 v{T+1}, v{T+1}, v{T+5}         ; r*64 + (G%2)*32 + c*8
    v_lshlrev_b32 v{T+2}, 9, v{T}
    v_add_u32 v{V_SB[0]}, v{T+1}, v{T+2}     ; + h*512
    v_add_u32 v{V_SB[1]}, {3*HS}, v{V_SB[0]}
    v_lshlrev_b32 v{T+2}, 10, v{T}
    v_add_u32 v{V_SL[0]}, v{T+1}, v{T+2}     ; + h*1024
    v_add_u32 v{V_SL[1]}, {SLOT}, v{V_SL[0]}
    v_add_u32 v{V_SL[2]}, {2*SLOT}, v{V_SL[0]}
    v_add_u32 v{V_SL[3]}, {3*SLOT}, v{V_SL[0]}
    v_add_u32 v{V_VO2}, {3*HS}, v{V_SL[0]}
    v_and_b32 v{T+8}, 31, v{L}
    v_lshlrev_b32 v{T+8}, 4, v{T+8}
    v_lshlrev_b32 v{T+9}, 15, v{T}
    v_add_u32 v{V_QKO}, v{T+8}, v{T+9}
    v_mul_u32_u24 v{V_HH}, 304, v{T}
    s_lshl_b32 s{S_T0}, s{S_B}, 3
    s_lshl_b32 s{S_T1}, s{S_W}, 1
    s_add_u32 s{S_T0}, s{S_T0}, s{S_T1}
    s_mul_i32 s{S_X0}, s{S_T0}, 36864
    s_add_u32 s{S_X0}, s{S_X0}, {XF_OFF}
    s_add_u32 s{S_X1}, s{S_X0}, 36864
    s_mul_i32 s{S_T2}, s{S_T0}, {288*1024}
    s_add_u32 s{S_T2}, s{S_T2}, {HF_OFF}
    s_lshl_b32 s{S_T1}, s{S_FD}, 11
    s_add_u32 s{S_H0}, s{S_T2}, s{S_T1}
    s_add_u32 s{S_H1}, s{S_H0}, {288*1024}
    s_lshl_b32 s{S_T1}, s{S_FS}, 11
    s_add_u32 s{S_HS0}, s{S_T2}, s{S_T1}
    s_add_u32 s{S_HS1}, s{S_HS0}, {288*1024}
    s_lshl_b32 s{S_QA}, s{S_T0}, 9           ; token0*16
    s_add_u32 s{S_QA}, s{S_QA}, {QK_OFF}
    s_mul_i32 s{S_QB}, s{S_T0}, {2*608}
    s_add_u32 s{S_QB}, s{S_QB}, {VT_OFF}
    s_cmp_eq_u32 s{S_CLS}, 1
    s_cbranch_scc1 L_cls1
    s_cmp_eq_u32 s{S_CLS}, 2
    s_cbranch_scc1 L_cls2
    s_cmp_eq_u32 s{S_CLS}, 3
    s_cbranch_scc1 L_cls3
    """)
    for cls in (0,1,2,3):
        if cls: e(f"L_cls{cls}:")
        epA,epB=startup(self,cls)
        interval(self,0,3,0,epiA=epA,epiB=epB,dmas=(fdma(1,"d1"),fdma(2,"d2",True)),need="d0")
        if cls<3: e("s_branch L_j1")
    e("L_j1:")
    interval(self,1,0,1,dmas=(fdma(3,"d3"),),need="d1 need:q",after_bar=self.flag_store(1,ET+20))
    interval(self,2,1,2,dmas=(fdma(0,"d0"),),need="d2")
    interval(self,3,2,3,epiB=epi_set(S0),dmas=(fdma(1,"d1"),),need="d3")
    interval(self,0,3,0,epiA=epi_set(S1),dmas=(fdma(2,"d2"),),need="d0")
    H=getattr(self,'hook',None)
    if H is None:
        interval(self,1,0,1,need="d1")
        interval(self,2,1,2,need="d2")
        interval(self,3,2,3,epiB=epi_set(S0),pre_next=False,bar=False)
        for s in epi_set(S1): e(s)
    else:
        interval(self,1,0,1,need="d1",extra=H.j5())
        H.pre6()
        interval(self,2,1,2,need="d2",extra=H.j6())
        interval(self,3,2,3,epiB=epi_set(S0),pre_next=False,need="kv",extra=H.j7())
        self.final_epi=epi_set(S1)
    self.L.estamp()
```

```python
from base import *
from p0 import V_QKO
import p1
S_HEAD,S_QB,S_OFF2=60,61,62
S_KG=[63,64,65]
S_VG=[66,67,68]
S_KL=[69,70,71]
S_VL=[72,73,74]
S_LD,S_CUR,S_NXT,S_CNT=75,76,77,78
S_LO,S_HI,S_MK=80,82,40
S_QG=42
S_FK,S_FV=43,44
S_OA,S_OR=45,46
RING=[0,110592,73728,36864]; RSZ=147456; RSTEP=36864
SA=[[0,16],[32,48]]
Q1=[128,136]; Q2=[132,140]
OA=[144,160]
PP=[[176,184],[192,200]]
CB=[224,240]
K1=[0,8]; K2=[4,12]; VV=[[16,20],[24,28]]
V_PL,V_PKA,V_PVV=64,65,66
V_KA,V_KB,V_KAN,V_KBN,V_VV=67,68,69,70,71
E_PL,E_PKA,E_PVV,E_FA=146,147,148,149
E_POLL=144
OFFSET=90.0
def a4(b): return f"a[{b}:{b+3}]"

class Hook:
    def __init__(self,F): self.F=F
    def j5(self):
        L=V_LANE
        s=[]
        s+= [f"s_and_b32 s{S_HEAD}, s2, 7", f"s_lshl_b32 s{S_HEAD}, s{S_HEAD}, 2", f"s_add_u32 s{S_HEAD}, s{S_HEAD}, s{S_R}",
             f"s_lshr_b32 s{S_QB}, s2, 5", f"s_and_b32 s{S_OFF2}, s{S_HEAD}, 3",
             f"s_mul_i32 s{S_T0}, s{S_HEAD}, 18", f"s_lshr_b32 s{S_T0}, s{S_T0}, 3",
             f"s_lshl_b32 s{S_T0}, s{S_T0}, 15",
             f"s_add_u32 s{S_FK}, s{S_T0}, {QK_OFF+72*QK_OCT}",
             f"s_add_u32 s{S_QG}, s{S_T0}, {QK_OFF}",
             f"s_lshl_b32 s{S_T1}, s{S_QB}, 12", f"s_add_u32 s{S_QG}, s{S_QG}, s{S_T1}",
             f"s_lshl_b32 s{S_T1}, s{S_W}, 10", f"s_add_u32 s{S_QG}, s{S_QG}, s{S_T1}",
             f"s_add_u32 s{S_KG[0]}, s{S_FK}, s{S_T1}",
             f"s_add_u32 s{S_KG[1]}, s{S_KG[0]}, {QK_OCT}", f"s_add_u32 s{S_KG[2]}, s{S_KG[0]}, {2*QK_OCT}",
             f"s_mov_b32 s{S_KL[0]}, s{S_T1}", f"s_add_u32 s{S_KL[1]}, s{S_T1}, 4096", f"s_add_u32 s{S_KL[2]}, s{S_T1}, 8192",
             f"s_mul_i32 s{S_FV}, s{S_HEAD}, {VT_HEAD}", f"s_add_u32 s{S_FV}, s{S_FV}, {VT_OFF}"]
        for i in range(3):
            s+= [f"s_add_u32 s{S_T1}, s{S_W}, {4*i}", f"s_min_u32 s{S_T1}, s{S_T1}, 9", f"s_lshl_b32 s{S_T1}, s{S_T1}, 10",
                 f"s_add_u32 s{S_VG[i]}, s{S_FV}, s{S_T1}", f"s_add_u32 s{S_VL[i]}, s{S_T1}, 12288"]
        s+= [f"s_mov_b32 s{S_LD}, 0", f"s_mov_b32 s{S_LO}, -1", f"s_mov_b32 s{S_LO+1}, 0", f"s_mov_b32 s{S_HI}, 0", f"s_mov_b32 s{S_HI+1}, -1"]
        s+= [f"s_lshl_b32 s{S_T1}, s{S_W}, 13", f"s_add_u32 s{S_T1}, s{S_T1}, {FLAG_OFF+1*FLAG_PH}", f"s_mov_b32 s47, s{S_T1}",
             f"v_lshlrev_b32 v{E_FA}, 7, v{L}",
             f"buffer_load_dwordx2 v[{E_POLL}:{E_POLL+1}], v{E_FA}, s[{S_WS}:{S_WS+3}], s47 offen sc1"]
        T=150
        s+= [f"v_and_b32 v{T}, 31, v{L}", f"v_lshlrev_b32 v{E_PL}, 4, v{T}", f"v_lshrrev_b32 v{T+1}, 5, v{L}",
             f"v_lshlrev_b32 v{T+2}, 12, v{T+1}", f"v_add_u32 v{E_PKA}, v{E_PL}, v{T+2}",
             f"v_min_u32 v{T+2}, 18, v{T}", f"v_add_u32 v{T+3}, -20, v{T}", f"v_cmp_gt_u32 vcc, 8, v{T+3}",
             f"v_cndmask_b32 v{T+2}, v{T+2}, 0, vcc", f"v_lshlrev_b32 v{T+2}, 4, v{T+2}",
             f"v_mul_u32_u24 v{T+3}, 304, v{T+1}", f"v_add_u32 v{E_PVV}, v{T+2}, v{T+3}"]
        return [(s,4,68)]
    def pre6(self):
        F=self.F; e=F.e
        e(f"v_cmp_ne_u64 vcc, s[{S_EP}:{S_EP+1}], v[{E_POLL}:{E_POLL+1}]")
        e("s_cbranch_vccz L_f1ok")
        F.poll([E_FA], 47, E_POLL)
        e("L_f1ok:")
    def j6(self):
        d=dma_chunk("kv")+dma_chunk("kv")
        q=[]
        for t in (0,1):
            q.append(f"buffer_load_dwordx4 {r4(Q1[t])}, v{V_QKO}, s[{S_WS}:{S_WS+3}], s{S_QG} offen offset:{512*t} sc1")
        q.append(f"s_add_u32 s{S_QG}, s{S_QG}, {2*QK_OCT}")
        for t in (0,1):
            q.append(f"buffer_load_dwordx4 {r4(Q2[t])}, v{E_PL}, s[{S_WS}:{S_WS+3}], s{S_QG} offen offset:{512*t} sc1")
        return [(q,2,12),(d,12,66)]
    def j7(self):
        s=[]
        for d in range(3):
            g=[f"s_cmp_gt_u32 s{S_OFF2}, {d}", f"s_cselect_b64 s[{S_MK}:{S_MK+1}], s[{S_HI}:{S_HI+1}], -1"]
            s.append(g)
            for t in (0,1): s.append(f"v_cndmask_b32 v{Q1[t]+d}, 0, v{Q1[t]+d}, s[{S_MK}:{S_MK+1}]")
        for d in range(4):
            g=[f"s_cmp_ge_u32 s{S_OFF2}, {d}", f"s_cselect_b64 s[{S_MK}:{S_MK+1}], s[{S_LO}:{S_LO+1}], 0"]
            s.append(g)
            for t in (0,1): s.append(f"v_cndmask_b32 v{Q2[t]+d}, 0, v{Q2[t]+d}, s[{S_MK}:{S_MK+1}]")
        r=[f"v_add_u32 v{E_FA}, 8192, v{E_PL}"]
        for t in (0,1):
            r.append(f"ds_read_b128 {a4(K1[t])}, v{E_PKA} offset:{512*t}")
            r.append(f"ds_read_b128 {a4(K2[t])}, v{E_FA} offset:{512*t}")
        return [(s,4,34),(r,36,60)]

def dma_chunk(tag):
    l=[]
    for o in range(3):
        l.append([f"s_add_u32 m0, s{S_LD}, s{S_KL[o]}",
                  f"buffer_load_dwordx4 v{V_XO}, s[{S_WS}:{S_WS+3}], s{S_KG[o]} offen sc1 lds ; tag:{tag}",
                  f"s_add_u32 s{S_KG[o]}, s{S_KG[o]}, 4096"])
    for i in range(3):
        g=[f"s_add_u32 m0, s{S_LD}, s{S_VL[i]}",
           f"buffer_load_dwordx4 v{V_XO}, s[{S_WS}:{S_WS+3}], s{S_VG[i]} offen sc1 lds ; tag:{tag}",
           f"s_add_u32 s{S_VG[i]}, s{S_VG[i]}, 9728"]
        if i==2: g+=[f"s_sub_u32 s{S_LD}, s{S_LD}, {RSTEP}", f"s_cselect_b32 s{S_LD}, {RSZ-RSTEP}, s{S_LD}"]
        l.append(g)
    return l

def qk(tile_buf, dst, q, c):
    C = r16(c) if c is not None else "0"
    return [f"{MF} {r16(dst)}, {a4(K1[tile_buf])}, {r4(Q1[q])}, {C}",
            f"{MF} {r16(dst)}, {a4(K2[tile_buf])}, {r4(Q2[q])}, {r16(dst)}"]
def pv(vbuf, q, p, zero=False):
    o=OA[q]
    return [f"{MF} {r16(o)}, {a4(VV[vbuf][0])}, {r4(p)}, {'0' if zero else r16(o)}",
            f"{MF} {r16(o)}, {a4(VV[vbuf][1])}, {r4(p+4)}, {r16(o)}"]
def softmax_ops(s,p):
    ops=[]
    for g in range(4):
        for j in range(4): ops.append(f"v_exp_f32 v{s+4*g+j}, v{s+4*g+j}")
        if g>0:
            for j in range(2): ops.append(f"v_cvt_pk_bf16_f32 v{p+2*(g-1)+j}, v{s+4*(g-1)+2*j}, v{s+4*(g-1)+2*j+1}")
    for j in range(2): ops.append(f"v_cvt_pk_bf16_f32 v{p+6+j}, v{s+12+2*j}, v{s+12+2*j+1}")
    return ops

def tile_iter(F, t, first=0, extra=None, lastq=False):
    e=F.e
    cur=t%2; nxt=1-cur
    qa=qk(nxt,SA[nxt][0],0,CB[0]); qb=qk(nxt,SA[nxt][1],1,CB[1])
    z=(first==2)
    pa=pv(nxt,0,PP[nxt][0],z); pb=pv(nxt,1,PP[nxt][1],z)
    m=[qa[0],pa[0],qb[0],pb[0],qa[1],pa[1],qb[1],pb[1]]
    if first==1: m=[qa[0],None,qb[0],None,qa[1],None,qb[1],None]
    if lastq: m=[None,pa[0],None,pb[0],None,pa[1],None,pb[1]]
    va=softmax_ops(SA[cur][0],PP[cur][0])+softmax_ops(SA[cur][1],PP[cur][1])
    if t+2<8: ka,kb,o=V_KA,V_KB,(t+2)*512
    else: ka,kb,o=V_KAN,V_KBN,(t+2-8)*512
    rd=[[f"ds_read_b128 {a4(K1[cur])}, v{ka} offset:{o}"],[f"ds_read_b128 {a4(K2[cur])}, v{kb} offset:{o}"],
        [f"ds_read_b128 {a4(VV[cur][0])}, v{V_VV} offset:{t*1216}"],[f"ds_read_b128 {a4(VV[cur][1])}, v{V_VV} offset:{t*1216+608}"]]
    if lastq: rd[0]=[]; rd[1]=[]
    slots=[[] for _ in range(8)]
    slots[0]+=rd[0]; slots[1]+=rd[1]; slots[2]+=rd[2]; slots[3]+=rd[3]
    for i in range(8):
        if m[i]: e(m[i])
        for s in slots[i]: e(s)
        ex=(extra[i] if extra and i<len(extra) else [])
        v=va[6*i:6*i+6]
        for s in v[:3]: e(s)
        for s in ex: e(s)
        for s in v[3:]: e(s)

def chunk(F, kind, dmas=None, bar_ops=None, extras=None):
    e=F.e
    e(f"v_add_u32 v{V_KA}, s{S_CUR}, v{V_PKA}")
    e(f"v_add_u32 v{V_KAN}, s{S_NXT}, v{V_PKA}")
    e(f"s_add_u32 s{S_T0}, s{S_CUR}, 8192\ns_add_u32 s{S_T1}, s{S_NXT}, 8192\ns_add_u32 s{S_T2}, s{S_CUR}, 12288")
    e(f"v_add_u32 v{V_KB}, s{S_T0}, v{V_PL}")
    e(f"v_add_u32 v{V_KBN}, s{S_T1}, v{V_PL}")
    e(f"v_add_u32 v{V_VV}, s{S_T2}, v{V_PVV}")
    e(f"s_mov_b32 s{S_CUR}, s{S_NXT}\ns_sub_u32 s{S_NXT}, s{S_NXT}, {RSTEP}\ns_cselect_b32 s{S_NXT}, {RSZ-RSTEP}, s{S_NXT}")
    for t in range(8):
        ex=[[] for _ in range(8)]
        if dmas and t<3:
            import os
            if 'm0early' in os.environ.get("X2",""):
                ex[1]+=dmas[2*t][:1]; ex[2]+=dmas[2*t][1:]; ex[5]+=dmas[2*t+1][:1]; ex[6]+=dmas[2*t+1][1:]
            else:
                ex[2]+=dmas[2*t]; ex[6]+=dmas[2*t+1]
        if t==5 and bar_ops is not None: ex[6]+=bar_ops
        if extras and t in extras:
            for i,o in extras[t].items(): ex[i]+=o
        first=0
        if kind=='first': first={0:1,1:2}.get(t,0)
        tile_iter(F,t,first,ex,lastq=(kind=='last' and t==7))
    if F.fine: F.L.estamp()

def set_c(F, regs_m, off):
    e=F.e
    for q in (0,1):
        m=regs_m[q]; t=regs_m[q]+2
        e(f"v_mov_b32 v{t}, v{m}")
        e(f"v_permlane32_swap_b32 v{m}, v{t}")
        e(f"v_max_f32 v{m}, v{m}, v{t}")
        if off: e(f"v_add_f32 v{m}, {off}, v{m}")
        e(f"v_sub_f32 v{CB[q]}, 0, v{m}")
        for j in range(1,16): e(f"v_mov_b32 v{CB[q]+j}, v{CB[q]}")

def max_ops(s, m, first):
    ops=[]
    rest=list(range(16))
    if first:
        ops.append(f"v_max3_f32 v{m}, v{s}, v{s+1}, v{s+2}"); rest=rest[3:]
    while rest:
        if len(rest)>=2:
            ops.append(f"v_max3_f32 v{m}, v{m}, v{s+rest[0]}, v{s+rest[1]}"); rest=rest[2:]
        else:
            ops.append(f"v_max_f32 v{m}, v{m}, v{s+rest[0]}"); rest=[]
    return ops

def phase2(F):
    e=F.e; k=F.k; L=V_LANE
    M=[216,217]
    mf=qk(0,SA[0][0],0,None)+qk(0,SA[0][1],1,None)+qk(1,SA[1][0],0,None)+qk(1,SA[1][1],1,None)
    mf=[mf[0],mf[2],mf[1],mf[3],mf[4],mf[6],mf[5],mf[7]]
    fill=[[] for _ in range(8)]
    spread(fill,F.final_epi,0,8)
    for i in range(8):
        e(mf[i])
        for s in fill[i]: e(s)
    e(f"v_mov_b32 v{V_PL}, v{E_PL}\nv_mov_b32 v{V_PKA}, v{E_PKA}\nv_mov_b32 v{V_PVV}, v{E_PVV}")
    for s in max_ops(SA[0][0],M[0],True)+max_ops(SA[0][1],M[1],True)+max_ops(SA[1][0],M[0],False)+max_ops(SA[1][1],M[1],False): e(s)
    set_c(F,M,f"{f2u(OFFSET):#x}")
    for q in (0,1):
        for j in range(16): e(f"v_add_f32 v{SA[0][q]+j}, v{SA[0][q]+j}, v{CB[q]}")
    e(f"s_mov_b32 s{S_CUR}, {RING[0]}\ns_mov_b32 s{S_NXT}, {RING[1]}")
    e("s_barrier")
    F.L.estamp()
    tex=None
    if getattr(F,'hook3',None):
        t=72
        tp=[f"v_mul_u32_u24 v{t}, 7282, v{L}", f"v_lshrrev_b32 v{t}, 16, v{t}",
            f"v_mul_u32_u24 v{t+1}, 9, v{t}", f"v_sub_u32 v{t+1}, v{L}, v{t+1}",
            f"v_mul_u32_u24 v{t}, 1152, v{t}", f"v_lshl_add_u32 v{t}, v{t+1}, 7, v{t}",
            f"s_lshr_b32 s{S_T0}, s2, 3", f"s_mul_i32 s{S_T0}, s{S_T0}, 18", f"s_mul_i32 s{S_T1}, s{S_W}, 7",
            f"s_add_u32 s{S_T0}, s{S_T0}, s{S_T1}", f"s_mul_i32 s{S_T0}, s{S_T0}, 1152",
            f"s_mul_i32 s{S_T1}, s{S_X}, {576*1152}", f"s_add_u32 s{S_T1}, s{S_T1}, s{S_T0}",
            f"s_mov_b32 s48, s{P_WD}", f"s_mov_b32 s49, s{P_WD+1}", f"s_mov_b32 s50, {4608*1152}", f"s_mov_b32 s51, 0x00020000",
            f"buffer_load_dword v{t+2}, v{t}, s[48:51], s{S_T1} offen",
            f"s_mov_b32 s48, s{P_WO}", f"s_mov_b32 s49, s{P_WO+1}", f"s_mov_b32 s50, {576*1152}",
            f"buffer_load_dword v{t+3}, v{t}, s[48:51], s{S_T0} offen"]
        tex={3:{1:tp[:6],3:tp[6:13],5:tp[13:]}}
    chunk(F,'first',dmas=dma_chunk("kv"),bar_ops=["s_waitcnt vmcnt(8)" if tex else "s_waitcnt vmcnt(6)","s_barrier"]+F.flag_store(2,212),extras=tex)
    e(f"s_mov_b32 s{S_CNT}, {3 if getattr(F,'hook3',None) else 5}")
    e("L_att:")
    import os
    X=os.environ.get("X2","")
    chunk(F,'mid',dmas=(None if 'nodma' in X else dma_chunk("kv")),bar_ops=([] if 'nobar' in X else ["s_waitcnt vmcnt(6)","s_barrier"]))
    e(f"s_sub_u32 s{S_CNT}, s{S_CNT}, 1\ns_cmp_lg_u32 s{S_CNT}, 0\ns_cbranch_scc1 L_att")
    H3=getattr(F,'hook3',None)
    if H3: H3.att_tail(chunk,dma_chunk)
    else:
        chunk(F,'mid',bar_ops=["s_waitcnt vmcnt(0)","s_barrier"])
        chunk(F,'last')
    for s in [x for q in (0,1) for x in pv(1,q,PP[1][q])]: e(s)
    F.L.estamp()
    T=0
    for q in (0,1):
        o=OA[q]; m=T+q
        e(f"v_add_f32 v{m}, |v{o}|, |v{o+1}|")
        for j in range(2,11): e(f"v_add_f32 v{m}, v{m}, |v{o+j}|")
    e(f"v_add_f32 v{T+1}, v{T+1}, v{T}")
    e(f"s_mov_b32 s{S_T0}, {f2u(2.0**120):#x}")
    e(f"v_cmp_nlt_f32 vcc, v{T+1}, s{S_T0}")
    e("s_cbranch_vccz L_att_out")
    KV=f"s[{S_WS}:{S_WS+3}]"
    e(f"v_mov_b32 v{M[0]}, 0xff7fffff\nv_mov_b32 v{M[1]}, 0xff7fffff")
    e(f"s_mov_b32 s{S_CNT}, 64\ns_mov_b32 s{S_T0}, s{S_FK}")
    e("L_fb1:")
    e(f"s_add_u32 s{S_T1}, s{S_T0}, {2*QK_OCT}")
    e(f"buffer_load_dwordx4 {a4(K1[0])}, v{V_QKO}, {KV}, s{S_T0} offen sc1")
    e(f"buffer_load_dwordx4 {a4(K2[0])}, v{V_PL}, {KV}, s{S_T1} offen sc1")
    for s in qk(0,SA[0][0],0,None)+qk(0,SA[0][1],1,None): e(s)
    for s in max_ops(SA[0][0],M[0],False)+max_ops(SA[0][1],M[1],False): e(s)
    e(f"s_add_u32 s{S_T0}, s{S_T0}, 512\ns_sub_u32 s{S_CNT}, s{S_CNT}, 1\ns_cmp_lg_u32 s{S_CNT}, 0\ns_cbranch_scc1 L_fb1")
    set_c(F,M,None)
    for q in (0,1):
        for j in range(16): e(f"v_mov_b32 v{OA[q]+j}, 0")
    e(f"s_mov_b32 s{S_CNT}, 64\ns_mov_b32 s{S_T0}, s{S_FK}\ns_mov_b32 s{S_T2}, s{S_FV}")
    e("L_fb2:")
    e(f"s_add_u32 s{S_T1}, s{S_T0}, {2*QK_OCT}")
    e(f"buffer_load_dwordx4 {a4(K1[0])}, v{V_QKO}, {KV}, s{S_T0} offen sc1")
    e(f"buffer_load_dwordx4 {a4(K2[0])}, v{V_PL}, {KV}, s{S_T1} offen sc1")
    e(f"buffer_load_dwordx4 {a4(VV[0][0])}, v{V_PVV}, {KV}, s{S_T2} offen sc1")
    e(f"buffer_load_dwordx4 {a4(VV[0][1])}, v{V_PVV}, {KV}, s{S_T2} offen offset:608 sc1")
    for s in qk(0,SA[0][0],0,CB[0])+qk(0,SA[0][1],1,CB[1]): e(s)
    for s in softmax_ops(SA[0][0],PP[0][0])+softmax_ops(SA[0][1],PP[0][1]): e(s)
    for s in pv(0,0,PP[0][0])+pv(0,1,PP[0][1]): e(s)
    e(f"s_add_u32 s{S_T0}, s{S_T0}, 512\ns_add_u32 s{S_T2}, s{S_T2}, 1216\ns_sub_u32 s{S_CNT}, s{S_CNT}, 1\ns_cmp_lg_u32 s{S_CNT}, 0\ns_cbranch_scc1 L_fb2")
    e("L_att_out:")
    T=0
    e(f"""
    s_lshl_b32 s{S_T0}, s{S_QB}, 4
    s_lshl_b32 s{S_T1}, s{S_W}, 2
    s_add_u32 s{S_T0}, s{S_T0}, s{S_T1}
    s_mul_i32 s{S_T0}, s{S_T0}, 18432
    s_add_u32 s{S_T0}, s{S_T0}, {OF_OFF}
    s_lshr_b32 s{S_T1}, s{S_HEAD}, 1
    s_lshl_b32 s{S_T1}, s{S_T1}, 10
    s_add_u32 s{S_OA}, s{S_T0}, s{S_T1}
    s_and_b32 s{S_T1}, s{S_HEAD}, 1
    s_lshl_b32 s{S_T1}, s{S_T1}, 9
    s_add_u32 s{S_OA}, s{S_OA}, s{S_T1}          ; + ks*1024 + (head%2)*2*256
    s_lshr_b32 s{S_T1}, s{S_HEAD}, 4
    s_add_u32 s{S_T1}, s{S_T1}, 16
    s_lshl_b32 s{S_T1}, s{S_T1}, 10
    s_add_u32 s{S_OR}, s{S_T0}, s{S_T1}
    s_bfe_u32 s{S_T1}, s{S_HEAD}, 0x20002
    s_lshl_b32 s{S_T1}, s{S_T1}, 8
    s_add_u32 s{S_OR}, s{S_OR}, s{S_T1}
    s_and_b32 s{S_T1}, s{S_HEAD}, 3
    s_lshl_b32 s{S_T1}, s{S_T1}, 2
    s_add_u32 s{S_OR}, s{S_OR}, s{S_T1}          ; + (16+head/16)*1024 + g*256 + (head%4)*4
    v_bfe_u32 v{T+2}, v{L}, 4, 1
    v_mul_u32_u24 v{T+2}, 18432, v{T+2}
    v_and_b32 v{T+3}, 15, v{L}
    v_lshlrev_b32 v{T+3}, 4, v{T+3}
    v_add_u32 v{T+2}, v{T+2}, v{T+3}             ; (t/16)*18432 + t16*16
    v_lshrrev_b32 v{T+3}, 5, v{L}
    v_lshlrev_b32 v{T+3}, 8, v{T+3}
    v_add_u32 v{T+3}, v{T+2}, v{T+3}             ; + h*256
    v_mov_b32 v{T+4}, 0x80000000
    v_cndmask_b32 v{T+2}, v{T+4}, v{T+2}, s[{S_LO}:{S_LO+1}]
    """)
    for q in (0,1):
        o=OA[q]; b=T+8+8*q; r=T+4+q
        e(f"v_mov_b32 v{r}, v{o+10}\nv_mov_b32 v{T+6}, v{o+10}")
        e(f"v_permlane32_swap_b32 v{r}, v{T+6}")
        e(f"v_rcp_f32 v{r}, v{r}")
        for j in range(10): e(f"v_mul_f32 v{o+j}, v{o+j}, v{r}")
        for j in range(5): e(f"v_cvt_pk_bf16_f32 v{b+j}, v{o+2*j}, v{o+2*j+1}")
        e(f"buffer_store_dwordx4 v[{b}:{b+3}], v{T+3}, s[{S_WS}:{S_WS+3}], s{S_OA} offen sc1 ; tag:o")
        e(f"buffer_store_dword v{b+4}, v{T+2}, s[{S_WS}:{S_WS+3}], s{S_OR} offen sc1 ; tag:o")
        if q==0: e(f"s_add_u32 s{S_OA}, s{S_OA}, {2*18432}\ns_add_u32 s{S_OR}, s{S_OR}, {2*18432}")
    F.L.estamp()
    F.base_force.update({"L_f1ok":True,"L_att_out":True})
    F.vforce+= [{"L_f1ok":False},{"L_att_out":False}]
```

```python
from base import *
import p2
from p2 import RING
SLOT=36864
ACC=[0,16,32,48,128,144,160,176,192]
HB=32
ARING=176; NR=8; PD=6
V_D=72
V_TRP=81; V_SL=[82,83,84,85]
V_PO=86; V_FA=87; V_POLL=88
ET=96
S_WD=48
S_PFO,S_PFL=52,53
S_HG=54
S_TB,S_DH=55,56
S_PS=57
S_FO=58
def hreg(ks): return f"a[{HB+4*ks}:{HB+4*ks+3}]"
def af(n): return ARING+4*(n%NR)
def rd(n, slot, m):
    b=af(n); o=(m//3)*3072+(m%3)*64
    return [f"ds_read_b64_tr_b16 a[{b}:{b+1}], v{V_SL[slot]} offset:{o}",
            f"ds_read_b64_tr_b16 a[{b+2}:{b+3}], v{V_SL[slot]} offset:{o+1536}"]
def wdma(j):
    slot=j%4; tag=f"w{slot}"
    l=[]
    for i in range(9):
        g=[f"s_add_u32 m0, s{S_PFL}, {RING[slot]+1024*i}",
           f"buffer_load_dwordx4 v{V_D+i}, s[{S_WD}:{S_WD+3}], s{S_PFO} offen lds ; tag:{tag}"]
        if i==8:
            if j%3<2: g.append(f"s_add_u32 s{S_PFO}, s{S_PFO}, {192*1152}")
            else: g.append(f"s_sub_u32 s{S_PFO}, s{S_PFO}, {2*192*1152-192}")
        l.append(g)
    return l
def epi(g):
    ops=[]
    for dt in range(3*g,3*g+3):
        a=ACC[dt]; b=ET+8*(dt%2)
        for j,o in enumerate((0,2,8,10,4,6,12,14)):
            ops.append(f"v_cvt_pk_bf16_f32 v{b+j}, v{a+o}, v{a+o+1}")
            if j==3 or j==7:
                hf=j//4
                ops.append(f"buffer_store_dwordx4 v[{b+4*hf}:{b+4*hf+3}], v{V_PO}, s[{S_WS}:{S_WS+3}], s{S_PS} offen offset:{hf*512} sc1 ; tag:p")
        ops.append(f"s_add_u32 s{S_PS}, s{S_PS}, 1024")
    return ops
def hload(ks):
    g=[f"buffer_load_dwordx4 {hreg(ks)}, v{V_XO}, s[{S_WS}:{S_WS+3}], s{S_HG} offen offset:{(ks%4)*1024} sc1"]
    if ks%4==3: g.append(f"s_add_u32 s{S_HG}, s{S_HG}, 4096")
    return g

class Hook3:
    def __init__(self,F): self.F=F
    def setup(self):
        F=self.F; e=F.e; L=V_LANE; T=90
        F.k.srd(S_WD,P_WD,4608*1152)
        e(f"""
        s_lshr_b32 s{S_TB}, s2, 4
        s_bfe_u32 s{S_DH}, s2, 0x10003
        s_mul_i32 s{S_PFO}, s{S_X}, {576*1152}
        s_mul_i32 s{S_T0}, s{S_DH}, 576
        s_add_u32 s{S_PFO}, s{S_PFO}, s{S_T0}
        s_mul_i32 s{S_T0}, s{S_W}, {48*1152}
        s_add_u32 s{S_PFO}, s{S_PFO}, s{S_T0}
        s_mul_i32 s{S_PFL}, s{S_W}, 9216
        s_lshl_b32 s{S_T0}, s{S_TB}, 2
        s_add_u32 s{S_T0}, s{S_T0}, s{S_W}
        s_mul_i32 s{S_HG}, s{S_T0}, {288*1024}
        s_mul_i32 s{S_T1}, s{S_X}, {36*1024}
        s_add_u32 s{S_HG}, s{S_HG}, s{S_T1}
        s_add_u32 s{S_HG}, s{S_HG}, {HF_OFF}
        s_mul_i32 s{S_PS}, s{S_T0}, {2*18432}
        s_mul_i32 s{S_T1}, s{S_X}, {PART_CH}
        s_add_u32 s{S_PS}, s{S_PS}, s{S_T1}
        s_mul_i32 s{S_T1}, s{S_DH}, {9*1024}
        s_add_u32 s{S_PS}, s{S_PS}, s{S_T1}
        s_add_u32 s{S_PS}, s{S_PS}, {PART_OFF}
        s_lshl_b32 s{S_T0}, s{S_B}, 5
        s_add_u32 s{S_T0}, s{S_T0}, s{S_X}
        s_lshl_b32 s{S_T0}, s{S_T0}, 7
        s_add_u32 s{S_FO}, s{S_T0}, {FLAG_OFF+2*FLAG_PH}
        v_and_b32 v{T}, 3, v{L}
        v_lshlrev_b32 v{V_FA}, 10, v{T}
        buffer_load_dwordx2 v[{V_POLL}:{V_POLL+1}], v{V_FA}, s[{S_WS}:{S_WS+3}], s{S_FO} offen sc1
        """)
        for i in range(3):
            e(f"""
            v_add_u32 v{T}, {64*i}, v{L}
            v_mul_u32_u24 v{T+1}, 5462, v{T}
            v_lshrrev_b32 v{T+1}, 16, v{T+1}
            v_mul_u32_u24 v{T+2}, 12, v{T+1}
            v_sub_u32 v{T+2}, v{T}, v{T+2}
            v_mul_u32_u24 v{T+1}, 1152, v{T+1}
            v_lshl_add_u32 v{V_D+i}, v{T+2}, 4, v{T+1}
            v_add_u32 v{V_D+i+3}, {16*1152}, v{V_D+i}
            v_add_u32 v{V_D+i+6}, {32*1152}, v{V_D+i}
            """)
    def setup2(self):
        L=V_LANE; T=90
        s=f"""
        v_lshrrev_b32 v{T}, 5, v{L}
        v_bfe_u32 v{T+1}, v{L}, 2, 2
        v_lshl_add_u32 v{T+2}, v{T}, 2, v{T+1}
        v_mul_u32_u24 v{T+2}, 192, v{T+2}
        v_bfe_u32 v{T+3}, v{L}, 4, 1
        v_lshl_add_u32 v{T+2}, v{T+3}, 5, v{T+2}
        v_and_b32 v{T+4}, 3, v{L}
        v_lshl_add_u32 v{V_TRP}, v{T+4}, 3, v{T+2}
        v_add_u32 v{V_SL[0]}, {RING[0]}, v{V_TRP}
        v_add_u32 v{V_SL[1]}, {RING[1]}, v{V_TRP}
        v_add_u32 v{V_SL[2]}, {RING[2]}, v{V_TRP}
        v_add_u32 v{V_SL[3]}, {RING[3]}, v{V_TRP}
        v_mul_u32_u24 v{T+3}, 18432, v{T+3}
        v_and_b32 v{T+4}, 15, v{L}
        v_lshl_add_u32 v{T+3}, v{T+4}, 4, v{T+3}
        v_lshl_add_u32 v{V_PO}, v{T}, 8, v{T+3}
        """
        return [x.strip() for x in s.strip().split('\n')]
    def att_tail(self, chunk):
        F=self.F; e=F.e
        self.setup()
        chk=[f"v_cmp_ne_u64 vcc, s[{S_EP}:{S_EP+1}], v[{V_POLL}:{V_POLL+1}]","s_cbranch_vccz L_f2ok"]+F.poll_ops([V_FA],S_FO,V_POLL)+["L_f2ok:"]
        d0=wdma(0); d1=wdma(1)
        def place(ex,groups,lo,hi):
            n=len(groups)
            for i,g in enumerate(groups):
                p=lo+(i*(hi-lo))//n
                ex[p//8].setdefault(p%8,[]); ex[p//8][p%8]+=(g if isinstance(g,list) else [g])
        hl=[hload(ks) for ks in range(24)]
        ex={t:{} for t in range(8)}
        place(ex,d0,1,36)
        place(ex,[chk],12,13)
        place(ex,hl[:12],36,64)
        chunk(F,'mid',bar_ops=["s_barrier ; need:kv"],extras=ex)
        ex={t:{} for t in range(8)}
        place(ex,hl[12:],0,24)
        place(ex,d1,24,60)
        place(ex,self.setup2(),30,46)
        chunk(F,'last',bar_ops=["s_barrier"],extras=ex)
        F.base_force.update({"L_f2ok":True}); F.vforce+=[{"L_f2ok":False}]

def interval(F, j, dmas=(), need=None, after_bar=None, extra=None, last=False):
    e=F.e
    slot=j%4; nslot=(j+1)%4
    g,kr=divmod(j,3)
    mf=[]
    for m in range(36):
        kl,dtl=divmod(m,3); ks=12*kr+kl; a=ACC[3*g+dtl]
        c="0" if ks==0 else r16(a)
        b=af(36*j+m)
        mf.append(f"{MF} {r16(a)}, a[{b}:{b+3}], {hreg(ks)}, {c}")
    fill=[[] for _ in range(36)]
    fill[0]+=["s_barrier"+(f" ; need:{need}" if need else "")]
    if after_bar: fill[0]+=after_bar
    for n in range(36):
        m=n+PD
        if m<36: fill[n]+=rd(36*j+m,slot,m)
        elif not last: fill[n]+=rd(36*j+m,nslot,m-36)
    if dmas:
        for i,gp in enumerate(dmas):
            p=1+(i*33)//len(dmas)
            fill[p]+=gp[:1]; fill[p+1]+=gp[1:]
    if extra:
        for (ops,lo,hi) in extra: spread(fill,ops,lo,hi)
    if F.fine: fill[35]+=F.L.stamp()
    for i in range(36):
        e(mf[i])
        for s in fill[i]: e(s)

def phase3(F):
    e=F.e
    H4=getattr(F,'hook4',None)
    e("s_barrier ; need:w0")
    for n in range(PD):
        for s in rd(n,0,n): e(s)
    F.L.estamp()
    for j in range(9):
        dm=wdma(j+3) if j+3<=8 else []
        need=f"w{(j+1)%4}" if j<8 else None
        ab=None; ex=[]
        if j==0:
            ex+= [(wdma(2),1,11),([hload(ks) for ks in range(24,36)],11,23),(dm,23,35)]; dm=[]
        if j==1: need+=" need:o"; ab=F.flag_store(3,V_POLL)
        if j in (3,6): ex.append((epi(j//3-1),4,34))
        if H4:
            d4,ex4,pre=H4.p3(j)
            if pre: pre()
            if d4: dm=d4
            if ex4: ex+=ex4
        interval(F,j,dmas=dm,need=need,after_bar=ab,extra=ex,last=(j==8))
    F.L.estamp()
    for s in epi(2): e(s)
    F.L.estamp()
```

```python
from base import *
import p3
WO_BASE=55296
V_WM=112
V_WR=117
V_TR4,V_RO,V_R4,V_FA4=120,121,122,123
V_POLL=124
XR=64
X4=126
S_WO=60
S_XO=64
S_OUT=68
S_CS=72
S_OG=73
S_RB=74
S_PG=75
S_WG,S_WL=76,77
S_RG,S_RL=78,79
S_RI=40
S_FO3,S_FO4=43,44
S_ISB=45
ARING=p3.ARING; NR=p3.NR
SACC=224
F6=0
SEL=[24,28]
PT=72
T=32
def ofr(ks):
    b=4*ks if ks<8 else 208+4*(ks-8)
    return f"a[{b}:{b+3}]"

class Hook4:
    def __init__(self,F): self.F=F
    def setup(self):
        L=V_LANE; t=90
        s=f"""
        s_mov_b32 s{S_WO}, s{P_WO}
        s_mov_b32 s{S_WO+1}, s{P_WO+1}
        s_mov_b32 s{S_WO+2}, {576*1152}
        s_mov_b32 s{S_WO+3}, 0x00020000
        s_mov_b32 s{S_XO}, s{P_X}
        s_mov_b32 s{S_XO+1}, s{P_X+1}
        s_mov_b32 s{S_XO+2}, {2048*1152}
        s_mov_b32 s{S_XO+3}, 0x00020000
        s_mov_b32 s{S_OUT}, s{P_OUT}
        s_mov_b32 s{S_OUT+1}, s{P_OUT+1}
        s_mov_b32 s{S_OUT+2}, {2048*1152}
        s_mov_b32 s{S_OUT+3}, 0x00020000
        s_lshr_b32 s{S_T0}, s{S_X}, 1
        s_lshl_b32 s{S_T1}, s{S_T0}, 2
        s_lshl_b32 s{S_T1}, s{S_T1}, 0
        s_cmp_ge_u32 s{S_T0}, 2
        s_cselect_b32 s{S_ISB}, 1, 0
        s_add_u32 s{S_T1}, s{S_T1}, s{S_ISB}
        s_lshl_b32 s{S_T1}, s{S_T1}, 5
        s_bfe_u32 s{S_T2}, s2, 0x10003
        s_mul_i32 s{S_CS}, s{S_T2}, 576
        s_add_u32 s{S_CS}, s{S_CS}, s{S_T1}
        s_mul_i32 s{S_T2}, s{S_T2}, 9
        s_lshl_b32 s{S_T0}, s{S_T0}, 1
        s_add_u32 s{S_T2}, s{S_T2}, s{S_T0}
        s_lshl_b32 s{S_PG}, s{S_T2}, 10
        s_lshr_b32 s{S_T0}, s2, 4
        s_lshl_b32 s{S_T0}, s{S_T0}, 3
        s_and_b32 s{S_T1}, s{S_X}, 1
        s_lshl_b32 s{S_T1}, s{S_T1}, 2
        s_add_u32 s{S_T0}, s{S_T0}, s{S_T1}
        s_add_u32 s{S_T0}, s{S_T0}, s{S_W}
        s_mul_i32 s{S_T1}, s{S_T0}, 18432
        s_add_u32 s{S_OG}, s{S_T1}, {OF_OFF}
        s_add_u32 s{S_PG}, s{S_PG}, s{S_T1}
        s_add_u32 s{S_PG}, s{S_PG}, {PART_OFF}
        s_mul_i32 s{S_RB}, s{S_T0}, {16*1152}
        s_add_u32 s{S_RB}, s{S_RB}, s{S_CS}
        s_add_u32 s{S_T0}, s{S_W}, 12
        s_mul_i32 s{S_WG}, s{S_T0}, {36*1152}
        s_add_u32 s{S_WG}, s{S_WG}, s{S_CS}
        s_mul_i32 s{S_WL}, s{S_T0}, 5120
        s_add_u32 s{S_WL}, s{S_WL}, {WO_BASE}
        s_and_b32 s{S_T0}, s{S_W}, 1
        s_mul_i32 s{S_RG}, s{S_T0}, {288*1152}
        s_add_u32 s{S_RG}, s{S_RG}, s{S_CS}
        s_add_u32 s{S_T0}, s{S_T0}, 16
        s_mul_i32 s{S_RL}, s{S_T0}, 5120
        s_add_u32 s{S_RL}, s{S_RL}, {WO_BASE}
        s_lshl_b32 s{S_T0}, s{S_B}, 12
        s_add_u32 s{S_FO3}, s{S_T0}, {FLAG_OFF+3*FLAG_PH}
        s_lshr_b32 s{S_T0}, s2, 3
        s_lshl_b32 s{S_T0}, s{S_T0}, 10
        s_add_u32 s{S_FO4}, s{S_T0}, {FLAG_OFF+4*FLAG_PH}
        """
        ops=[x.strip() for x in s.strip().split('\n') if x.strip()]
        ops=[o for o in ops if not o.endswith(", 0") or not o.startswith("s_lshl_b32")]
        v=[]
        for i in range(5):
            v+= [f"v_add_u32 v{t}, {64*i}, v{L}", f"v_mul_u32_u24 v{t+1}, 6554, v{t}", f"v_lshrrev_b32 v{t+1}, 16, v{t+1}",
                 f"v_mul_u32_u24 v{t+2}, 10, v{t+1}", f"v_sub_u32 v{t+2}, v{t}, v{t+2}",
                 f"v_bfe_u32 v{t+3}, v{t+1}, 3, 1", f"v_mul_u32_u24 v{t+3}, 18, v{t+3}",
                 f"v_lshrrev_b32 v{t+4}, 4, v{t+1}", f"v_lshl_add_u32 v{t+3}, v{t+4}, 3, v{t+3}",
                 f"v_bfe_u32 v{t+4}, v{t+1}, 2, 1", f"v_lshl_add_u32 v{t+3}, v{t+4}, 2, v{t+3}",
                 f"v_and_b32 v{t+4}, 3, v{t+1}", f"v_add_u32 v{t+3}, v{t+3}, v{t+4}",
                 f"v_mul_u32_u24 v{t+3}, 1152, v{t+3}", f"v_lshl_add_u32 v{V_WM+i}, v{t+2}, 4, v{t+3}"]
        for rho in range(3):
            v+= [[f"s_cmp_lt_u32 s{S_W}, 2", f"s_cselect_b32 s{S_T0}, {rho}, {min(3+rho,4)}", f"s_lshl_b32 s{S_T1}, s{S_T0}, 10",
                  f"s_add_u32 s{S_RI+rho}, s{S_RL}, s{S_T1}", f"s_lshl_b32 s{S_T0}, s{S_T0}, 6", f"v_add_u32 v{t}, s{S_T0}, v{L}"],
                 f"v_mul_u32_u24 v{t+1}, 6554, v{t}", f"v_lshrrev_b32 v{t+1}, 16, v{t+1}",
                 f"v_mul_u32_u24 v{t+2}, 10, v{t+1}", f"v_sub_u32 v{t+2}, v{t}, v{t+2}",
                 f"v_bfe_u32 v{t+3}, v{t+1}, 2, 2", f"v_mul_u32_u24 v{t+3}, 72, v{t+3}",
                 f"v_lshrrev_b32 v{t+4}, 4, v{t+1}", f"v_mul_u32_u24 v{t+4}, 36, v{t+4}", f"v_add_u32 v{t+3}, v{t+3}, v{t+4}",
                 f"v_bfe_u32 v{t+4}, v{t+1}, 1, 1", f"v_mul_u32_u24 v{t+4}, 18, v{t+4}", f"v_add_u32 v{t+3}, v{t+3}, v{t+4}",
                 f"v_and_b32 v{t+4}, 1, v{t+1}", f"v_add_u32 v{t+3}, v{t+3}, v{t+4}", f"v_add_u32 v{t+3}, 16, v{t+3}",
                 f"v_mul_u32_u24 v{t+3}, 1152, v{t+3}", f"v_lshl_add_u32 v{V_WR+rho}, v{t+2}, 4, v{t+3}"]
        v+= [f"v_lshrrev_b32 v{t}, 4, v{L}", f"v_bfe_u32 v{t+1}, v{L}, 2, 2", f"v_lshl_add_u32 v{t+2}, v{t}, 2, v{t+1}",
             f"v_mul_u32_u24 v{t+2}, 160, v{t+2}", f"v_and_b32 v{t+1}, 3, v{L}", f"v_lshl_add_u32 v{t+2}, v{t+1}, 3, v{t+2}",
             f"v_add_u32 v{V_TR4}, {WO_BASE}, v{t+2}",
             f"v_and_b32 v{t+1}, 15, v{L}", f"v_mul_u32_u24 v{t+1}, 1152, v{t+1}", f"v_lshl_add_u32 v{V_R4}, v{t}, 3, v{t+1}",
             f"v_and_b32 v{t+2}, 1, v{t}", f"v_lshl_add_u32 v{t+1}, v{t+2}, 5, v{t+1}", f"v_lshrrev_b32 v{t+2}, 1, v{t}",
             f"v_lshl_add_u32 v{V_RO}, v{t+2}, 4, v{t+1}",
             f"v_and_b32 v{t+1}, 31, v{L}", f"v_lshlrev_b32 v{V_FA4}, 7, v{t+1}"]
        return ops,v
    def wo_main(self,tag):
        l=[]
        for i in range(5):
            g=[f"s_add_u32 m0, s{S_WL}, {1024*i}",
               f"buffer_load_dwordx4 v{V_WM+i}, s[{S_WO}:{S_WO+3}], s{S_WG} offen lds ; tag:{tag}"]
            if i==4: g+=[f"s_sub_u32 s{S_WL}, s{S_WL}, {4*5120}", f"s_sub_u32 s{S_WG}, s{S_WG}, {4*36*1152}"]
            l.append(g)
        return l
    def wo_rem(self,tag):
        return [[f"s_mov_b32 m0, s{S_RI+r}", f"buffer_load_dwordx4 v{V_WR+r}, s[{S_WO}:{S_WO+3}], s{S_RG} offen lds ; tag:{tag}"] for r in range(3)]
    def p3(self,j):
        F=self.F
        if j==1:
            s,v=self.setup(); self.v=v
            return None,[(s,2,35)],None
        if j==2:
            n=len(self.v)//2
            return None,[(self.v[:n],1,36)],None
        if j==3:
            n=len(self.v)//2
            return None,[(self.v[n:],1,30)],None
        if j==6: return self.wo_main("woA")+self.wo_rem("woA"),[([f"buffer_load_dwordx2 v[{V_POLL}:{V_POLL+1}], v{V_FA4}, s[{S_WS}:{S_WS+3}], s{S_FO3} offen sc1"],33,35)],None
        if j==7: return self.wo_main("woA")+self.wo_main("woA"),None,None
        if j==8:
            x=[f"buffer_load_dwordx4 v[{XR}:{XR+3}], v{V_RO}, s[{S_XO}:{S_XO+3}], s{S_RB} offen",
               f"buffer_load_dwordx4 v[{XR+4}:{XR+7}], v{V_RO}, s[{S_XO}:{S_XO+3}], s{S_RB} offen offset:64",
               f"buffer_load_dwordx2 v[{X4}:{X4+1}], v{V_R4}, s[{S_XO}:{S_XO+3}], s{S_RB} offen offset:128",
               f"v_and_b32 v{V_FA4}, 0x380, v{V_FA4}"]
            def pre():
                e=F.e
                e(f"v_cmp_ne_u64 vcc, s[{S_EP}:{S_EP+1}], v[{V_POLL}:{V_POLL+1}]")
                e("s_cbranch_vccz L_f3ok")
                F.poll([V_FA4],S_FO3,V_POLL)
                e("L_f3ok:")
            F.base_force.update({"L_f3ok":True}); F.vforce+=[{"L_f3ok":False}]
            l=[]
            for ks in range(18):
                g=[f"buffer_load_dwordx4 {ofr(ks)}, v{V_XO}, s[{S_WS}:{S_WS+3}], s{S_OG} offen offset:{(ks%4)*1024} sc1"]
                if ks%4==3: g.append(f"s_add_u32 s{S_OG}, s{S_OG}, 4096")
                l.append(g)
            return None,[(self.wo_main("woB"),1,9),(l,9,33),(x,30,35)],pre
        return None,None,None

def phase4(F):
    e=F.e; L=V_LANE
    order=list(range(12,18))+list(range(4,12))+list(range(4))
    seq=[(ks,s) for ks in order for s in range(5)]
    PD=6
    def rd(n):
        ks,s=seq[n]; b=ARING+4*(n%NR); o=ks*5120+s*32
        base=V_TR4
        if o+2560>65535: base=V_WM; o-=46080
        return [f"ds_read_b64_tr_b16 a[{b}:{b+1}], v{base} offset:{o}", f"ds_read_b64_tr_b16 a[{b+2}:{b+3}], v{base} offset:{o+2560}"]
    e("s_barrier ; need:woA")
    e(f"v_add_u32 v{V_WM}, 46080, v{V_TR4}")
    for n in range(PD):
        for s in rd(n): e(s)
    first=set()
    nB=14*5
    for n,(ks,s) in enumerate(seq):
        b=ARING+4*(n%NR); a=SACC+4*s
        c="0" if s not in first else f"v[{a}:{a+3}]"; first.add(s)
        e(f"{MF16} v[{a}:{a+3}], a[{b}:{b+3}], {ofr(ks)}, {c}")
        if n+PD==nB: e("s_barrier ; need:woB")
        if n+PD<90:
            for x in rd(n+PD): e(x)
        if n==10:
            e(f"""
            v_lshrrev_b32 v{T}, 4, v{L}
            v_bfe_u32 v{T+1}, v{L}, 2, 2
            v_cmp_eq_u32 vcc, v{T}, v{T+1}
            v_and_b32 v{T+2}, 1, v{L}
            v_lshlrev_b32 v{T+2}, 4, v{T+2}
            v_mov_b32 v{T+3}, 0x3f80
            v_lshlrev_b32 v{T+3}, v{T+2}, v{T+3}
            v_cndmask_b32 v{T+3}, 0, v{T+3}, vcc
            v_bfe_u32 v{T+2}, v{L}, 1, 1
            v_cmp_eq_u32 vcc, 0, v{T+2}
            v_cndmask_b32 v{SEL[0]}, 0, v{T+3}, vcc
            v_cndmask_b32 v{SEL[0]+1}, v{T+3}, 0, vcc
            v_mov_b32 v{SEL[0]+2}, 0
            v_mov_b32 v{SEL[0]+3}, 0
            v_mov_b32 v{SEL[1]}, 0
            v_mov_b32 v{SEL[1]+1}, 0
            v_mov_b32 v{SEL[1]+2}, v{SEL[0]}
            v_mov_b32 v{SEL[1]+3}, v{SEL[0]+1}
            """)
    F.L.estamp()
    e("s_barrier ; need:p")
    for s in F.flag_store(4,V_POLL): e(s)
    F.poll([V_FA4],S_FO4,V_POLL)
    F.L.estamp()
    for c in range(8):
        for i in range(3):
            b=PT+4*(3*c+i)
            e(f"buffer_load_dwordx4 a[{b}:{b+3}], v{V_XO}, s[{S_WS}:{S_WS+3}], s{S_PG} offen offset:{1024*i} sc1")
        if c<7: e(f"s_add_u32 s{S_PG}, s{S_PG}, {PART_CH}")
    for m in range(2):
        x=XR+4*m
        e(f"v_permlane16_swap_b32 v{x}, v{x+2}\nv_permlane16_swap_b32 v{x+1}, v{x+3}")
    for c in range(8):
        for i in range(3):
            b=PT+4*(3*c+i)
            for hf in range(2):
                a=F6+4*(2*i+hf)
                e(f"{MF16} v[{a}:{a+3}], v[{SEL[hf]}:{SEL[hf]+3}], a[{b}:{b+3}], {'0' if c==0 else f'v[{a}:{a+3}]'}")
    F.L.estamp()
    e(f"s_cmp_eq_u32 s{S_ISB}, 0\ns_cbranch_scc1 L_p4a")
    for j in range(20): e(f"v_mov_b32 v{F6+j}, v{F6+4+j}")
    e("L_p4a:")
    F.vforce+=[{"L_p4a":True}]
    NL2E=f2u(-1.4426950408889634)
    G=T
    for j in range(20): e(f"v_mul_f32 v{G+j}, {NL2E:#x}, v{F6+j}")
    for j in range(20): e(f"v_exp_f32 v{G+j}, v{G+j}")
    for j in range(20): e(f"v_add_f32 v{G+j}, 1.0, v{G+j}")
    for j in range(20): e(f"v_rcp_f32 v{G+j}, v{G+j}")
    for j in range(20): e(f"v_mul_f32 v{F6+j}, v{F6+j}, v{G+j}")
    def xreg(s,d): return (XR+4*(s//2)+2*(s%2)+d) if s<4 else X4+d
    for s in range(5):
        for d in range(2):
            x=xreg(s,d); j=4*s+2*d
            e(f"v_lshlrev_b32 v{G}, 16, v{x}\nv_and_b32 v{G+1}, 0xffff0000, v{x}")
            e(f"v_fma_f32 v{G}, v{F6+j}, v{SACC+j}, v{G}\nv_fma_f32 v{G+1}, v{F6+j+1}, v{SACC+j+1}, v{G+1}")
            e(f"v_cvt_pk_bf16_f32 v{x}, v{G}, v{G+1}")
    for m in range(2):
        x=XR+4*m
        e(f"v_permlane16_swap_b32 v{x}, v{x+2}\nv_permlane16_swap_b32 v{x+1}, v{x+3}")
        e(f"buffer_store_dwordx4 v[{x}:{x+3}], v{V_RO}, s[{S_OUT}:{S_OUT+3}], s{S_RB} offen offset:{64*m}")
    e(f"buffer_store_dwordx2 v[{X4}:{X4+1}], v{V_R4}, s[{S_OUT}:{S_OUT+3}], s{S_RB} offen offset:128")
    F.L.estamp()
```

```python
import re, sys

TRANS = ("v_exp_f32","v_log_f32","v_rcp_f32","v_rsq_f32","v_sqrt_f32","v_sin_f32","v_cos_f32","v_exp_f16","v_rcp_iflag_f32")

def parse_reg(tok):
    tok = tok.strip()
    neg = tok.startswith('-')
    if neg: tok = tok[1:]
    if tok.startswith('|') and tok.endswith('|'): tok = tok[1:-1]
    m = re.fullmatch(r'([vas])(\d+)', tok)
    if m: return [(m.group(1), int(m.group(2)))]
    m = re.fullmatch(r'([vas])\[(\d+):(\d+)\]', tok)
    if m: return [(m.group(1), i) for i in range(int(m.group(2)), int(m.group(3))+1)]
    if tok == 'vcc': return [('s',106),('s',107)]
    if tok == 'vcc_lo': return [('s',106)]
    if tok == 'vcc_hi': return [('s',107)]
    if tok == 'exec': return [('x',0),('x',1)]
    if tok == 'exec_lo': return [('x',0)]
    if tok == 'exec_hi': return [('x',1)]
    if tok == 'm0': return [('m',0)]
    if tok == 'scc': return [('c',0)]
    return None

def split_ops(s):
    out=[]; depth=0; cur=''
    for ch in s:
        if ch=='[': depth+=1
        if ch==']': depth-=1
        if ch==',' and depth==0:
            out.append(cur.strip()); cur=''
        else: cur+=ch
    if cur.strip(): out.append(cur.strip())
    return out

class Ins:
    __slots__=("text","op","dst","src","kind","label","target","mods","passes","srcA","srcB","srcC","note","pre_wait","pre_nop","lds","nstates","storedata","opsraw","manual","tags","needs")
    def __init__(self, text):
        self.text=text; self.label=None; self.target=None; self.dst=[]; self.src=[]; self.kind=None
        self.mods=''; self.passes=0; self.srcA=[]; self.srcB=[]; self.srcC=[]; self.pre_wait={}; self.pre_nop=0
        self.lds=False; self.nstates=1; self.storedata=[]; self.op=None; self.opsraw=[]
        t=text.split(';')[0].strip()
        self.tags=[];self.needs=[]
        if ';' in text:
            cm=text.split(';',1)[1]
            self.tags=[('L',x) for x in re.findall(r'tag:(\w+)',cm)]
            self.needs=[('L',x) for x in re.findall(r'need:(\w+)',cm)]
        if not t: self.kind='empty'; return
        if t.endswith(':'):
            self.kind='label'; self.label=t[:-1]; return
        if t.startswith('.'):
            self.kind='directive'; return
        sp=t.split(None,1)
        op=sp[0]; self.op=op
        rest=sp[1] if len(sp)>1 else ''
        if op=='s_waitcnt':
            self.kind='wait'; self.mods=rest; return
        ops=split_ops(rest)
        if ops:
            last=ops[-1].split(None,1)
            if len(last)>1:
                ops[-1]=last[0]; self.mods=last[1]
        self.opsraw=ops
        regs=[parse_reg(o) for o in ops]
        def R(i): return (regs[i] or []) if i<len(regs) else []
        allfrom=lambda i: [r for j in range(i,len(regs)) for r in (regs[j] or [])]
        if op.startswith('v_mfma'):
            self.kind='mfma'
            self.dst=R(0); self.srcA=R(1); self.srcB=R(2); self.srcC=R(3); self.src=self.srcA+self.srcB+self.srcC
            if '32x32x16' in op or '32x32x8' in op: self.passes=8
            elif '16x16x32' in op or '16x16x16' in op: self.passes=4
            elif '32x32x4' in op: self.passes=16
            elif '16x16x4' in op and 'bf16' in op: self.passes=8
            elif '4x4x4' in op: self.passes=2
            else: raise ValueError("unknown mfma "+op)
        elif op.startswith('v_'):
            self.kind='valu'
            if op=='v_nop': return
            if op.startswith('v_cmpx'): raise ValueError("avoid v_cmpx")
            if op.startswith('v_cmp'):
                self.dst=R(0); self.src=allfrom(1)
            elif op.startswith('v_permlane32_swap') or op.startswith('v_permlane16_swap') or op.startswith('v_swap'):
                self.dst=R(0)+R(1); self.src=R(0)+R(1)
            elif op in('v_add_co_u32','v_sub_co_u32','v_addc_co_u32','v_subb_co_u32','v_add_co_u32_e32','v_addc_co_u32_e32'):
                self.dst=R(0)+R(1); self.src=allfrom(2)
            else:
                self.dst=R(0); self.src=allfrom(1)
                if op.startswith(('v_fmac','v_mac','v_dot2c','v_pk_fmac','v_writelane','v_dot4c')): self.src=self.src+R(0)
                if op.startswith('v_cndmask') and len(ops)==3: self.src=self.src+[('s',106),('s',107)]
                if op.startswith('v_cndmask_b32_e32'):
                    if ('s',106) not in self.src: self.src=self.src+[('s',106),('s',107)]
                if 'sdwa' in op or 'dst_sel' in self.mods:
                    if 'UNUSED_PRESERVE' in self.mods: self.src=self.src+R(0)
        elif op.startswith('ds_'):
            self.kind='ds'
            if op.startswith(('ds_read','ds_bpermute','ds_permute','ds_swizzle')) or '_rtn' in op:
                self.dst=R(0); self.src=allfrom(1)
            else:
                self.src=allfrom(0)
        elif op.startswith(('buffer_','global_')):
            self.kind='vmem'
            md=(' '+self.mods+' ')
            self.lds = ' lds ' in md or op.startswith('global_load_lds')
            if 'load' in op and not self.lds:
                self.dst=R(0); self.src=allfrom(1)
            elif 'load' in op:
                self.src=allfrom(0)+[('m',0)]
            elif 'atomic' in op:
                self.src=allfrom(0)
                if ' sc0 ' in md: self.dst=R(0)
            else:
                self.src=allfrom(0)
                if op.startswith('buffer_store'): self.storedata=R(0)
                else: self.storedata=R(1)
        elif op.startswith('s_'):
            self.kind='salu'
            if op=='s_nop':
                self.nstates=int(ops[0],0)+1; return
            if op.startswith(('s_cbranch','s_branch')):
                self.kind='branch'; self.target=ops[0]
                if 'vcc' in op: self.src=[('s',106),('s',107)]
                if 'exec' in op: self.src=[('x',0),('x',1)]
                return
            if op in('s_barrier','s_endpgm','s_setprio','s_sleep','s_sethalt'): return
            if op.startswith(('s_load','s_buffer_load','s_memtime','s_memrealtime')):
                self.kind='smem'; self.dst=R(0); self.src=allfrom(1); return
            if op.startswith('s_cmp') or op.startswith('s_bitcmp'):
                self.src=allfrom(0); return
            self.dst=R(0); self.src=allfrom(1)
            if 'saveexec' in op: self.dst=self.dst+[('x',0),('x',1)]; self.src+= [('x',0),('x',1)]
            if op.startswith(('s_addk','s_mulk','s_cmov','s_cselect')) :
                if op.startswith(('s_addk','s_mulk','s_cmov')): self.src+=R(0)
        else:
            raise ValueError("cannot parse: "+text)
    def is_real(self): return self.kind not in('empty','label','directive')

def parse_wait(mods):
    d={}
    for k in('vmcnt','lgkmcnt','expcnt'):
        m=re.search(k+r'\((\d+)\)',mods)
        if m: d[k]=int(m.group(1))
    return d

def make_trace(ins, loops=2, take_forward=False, maxlen=4000000, force=None):
    lab={i.label:n for n,i in enumerate(ins) if i.kind=='label'}
    tr=[]; pc=0; cnt={}
    force=force or {}
    while pc<len(ins):
        i=ins[pc]
        tr.append(pc)
        if len(tr)>maxlen: raise RuntimeError("trace too long")
        if i.kind=='salu' and i.op=='s_endpgm': break
        if i.kind=='branch':
            t=lab[i.target]
            if i.op=='s_branch':
                if t<=pc:
                    c=cnt.get(pc,0)
                    if c>=loops+1: break
                    cnt[pc]=c+1
                pc=t; continue
            if t<=pc:
                c=cnt.get(pc,0)
                if c<loops:
                    cnt[pc]=c+1; pc=t; continue
                else:
                    cnt[pc]=0
            else:
                tk = force.get(i.target, take_forward)
                if tk: pc=t; continue
        pc+=1
    return tr

MAXC={'vmcnt':63,'lgkmcnt':15}

def sim_waits(ins, tr, insert=True):
    q={'vmcnt':[], 'lgkmcnt':[]}
    changes=0
    smem_pending=False
    for k in tr:
        i=ins[k]
        if not i.is_real(): continue
        def apply(d):
            for c,n in d.items():
                if c in q:
                    while len(q[c])>n: q[c].pop(0)
        if i.kind=='wait':
            apply(parse_wait(i.mods)); continue
        touched=set(i.src)|set(i.dst)|set(i.needs)
        need={}
        for c in q:
            L=len(q[c])
            pos=-1
            for p in range(L-1,-1,-1):
                e=q[c][p]
                if e[0] and (e[0] & touched):
                    pos=p; break
            if pos>=0:
                n=L-1-pos
                if c=='lgkmcnt' and any(x[1]=='smem' for x in q[c]): n=0
                need[c]=min(n,MAXC[c])
        for c,n in need.items():
            old=i.pre_wait.get(c)
            if old is None or n<old:
                if not insert:
                    raise RuntimeError(f"missing wait before: {i.text} need {c}({n})")
                i.pre_wait[c]=n; changes+=1
        apply(i.pre_wait)
        if i.kind=='ds':
            q['lgkmcnt'].append((set(i.dst)|set(i.tags),'ds'))
        elif i.kind=='smem':
            n=1 if (i.op=='s_load_dword' or i.op=='s_buffer_load_dword') else 2
            q['lgkmcnt'].append((set(i.dst),'smem'))
            if n==2: q['lgkmcnt'].append((set(),'smem'))
        elif i.kind=='vmem':
            q['vmcnt'].append((set(i.dst)|set(i.tags),'vm'))
    return changes

def hazard_need(p, c):
    need=0
    pd=set(p.dst);
    if not pd and not p.storedata and p.kind!='mfma': return 0
    cs=set(c.src); cd=set(c.dst)
    isv=lambda r: r[0] in 'va'
    if p.kind=='valu':
        pv={r for r in pd if isv(r)}
        ps={r for r in pd if r[0]=='s'}
        if c.kind=='mfma' and pv & cs:
            need=max(need, 3 if p.op.startswith('v_dot') else 2)
        if p.op in TRANS and c.kind in('valu',) and c.op not in TRANS and (pv & (cs)):
            need=max(need,1)
        if p.op in TRANS and c.kind in('valu',) and c.op in TRANS and (pv & cs):
            need=max(need,0)
        if p.op.startswith('v_dot'):
            if c.kind in('valu','ds','vmem','mfma'):
                if c.op==p.op:
                    ab=set((parse_reg(c.opsraw[1]) or [])+(parse_reg(c.opsraw[2]) or []))
                    if pv & ab: need=max(need,3)
                elif pv & (cs|cd): need=max(need,3)
        if c.kind=='valu':
            if ps & cs:
                if c.op.startswith(('v_readlane','v_writelane')): need=max(need,4)
                else: need=max(need,2)
            if pv & cs:
                if c.op.startswith(('v_readfirstlane','v_readlane')): need=max(need,1)
                if c.op.startswith('v_permlane') or 'dpp' in c.op or 'row_' in c.mods or 'quad_perm' in c.mods or 'wave_' in c.mods: need=max(need,2)
                if ('sdwa' in p.op or 'dst_sel' in p.mods or ('op_sel' in p.mods and not p.op.startswith('v_pk') ) ): need=max(need,1)
            if (pv & cd) and ('sdwa' in p.op or 'dst_sel' in p.mods): need=max(need,1)
        if c.kind=='vmem' and ps & cs: need=max(need,5)
        if c.kind=='mfma' and ps & cs: need=max(need,2)
    if p.kind=='mfma':
        P=p.passes
        tab=lambda a,b,c_,d: {2:a,4:b,8:c_,16:d}[P]
        if c.kind=='mfma':
            if pd & set(c.srcC):
                if c.srcC==p.dst and c.passes==P: need=max(need,tab(2,0,0,0))
                else: need=max(need,tab(4,6,10,18))
            if pd & (set(c.srcA)|set(c.srcB)): need=max(need,tab(5,8,12,20))
            if (pd & cd) and not (pd & set(c.srcC)):
                if c.passes!=P or c.dst!=p.dst: need=max(need,tab(5,8,12,20))
        elif c.kind in('valu','ds','vmem'):
            if pd & (cs|cd): need=max(need,tab(5,8,12,20))
            if c.kind=='valu' and set(p.srcC) & cd: need=max(need,tab(1,3,7,15))
    if p.kind=='salu' and ('m',0) in pd:
        if c.kind=='vmem' and c.lds: need=max(need,1)
    if p.kind=='vmem' and p.storedata and len(p.storedata)>=3:
        sd=set(p.storedata)
        if sd & cd:
            need=max(need, 2 if c.kind in('valu',) else 1)
    return need

def states_of(i):
    n=i.nstates if i.is_real() else 0
    return n

def sim_hazards(ins, tr):
    changes=0
    hist=[]
    pos=0
    W=24
    for k in tr:
        i=ins[k]
        if not i.is_real(): continue
        pre=(1 if i.pre_wait else 0)+i.pre_nop
        pos+=pre
        if i.kind!='wait':
            worst=0
            for (p,ppos) in reversed(hist):
                dist=pos-ppos
                if dist>=W: break
                nd=hazard_need(p,i)
                if nd>dist: worst=max(worst,nd-dist)
            if worst>0:
                i.pre_nop+=worst; pos+=worst; changes+=1
        pos+=i.nstates
        hist.append((i,pos))
        if len(hist)>64: hist.pop(0)
    return changes

def finalize(lines, name="", variants=({},), loops=2, verbose=True):
    ins=[]
    for l in lines:
        for t in l.split('\n'):
            ins.append(Ins(t))
    traces=[]
    for v in variants:
        traces.append(make_trace(ins,loops=loops,take_forward=False,force=v))
    traces.append(make_trace(ins,loops=loops,take_forward=True))
    traces.append(make_trace(ins,loops=0,take_forward=False))
    for it in range(50):
        ch=0
        for tr in traces: ch+=sim_waits(ins,tr)
        if ch==0: break
    for it in range(50):
        ch=0
        for tr in traces: ch+=sim_hazards(ins,tr)
        if ch==0: break
    out=[]; nn=0; nw=0
    for i in ins:
        if i.pre_wait:
            out.append("    s_waitcnt "+" ".join(f"{c}({n})" for c,n in sorted(i.pre_wait.items(),reverse=True))); nw+=1
        n=i.pre_nop
        while n>0:
            m=min(n,16); out.append(f"    s_nop {m-1}"); n-=m; nn+=1
        if i.kind=='empty' and not i.text.strip(): continue
        out.append(i.text)
    if verbose:
        nreal=sum(1 for i in ins if i.is_real())
        print(f"[{name}] {nreal} instrs, inserted {nw} waits, {nn} nops", file=sys.stderr)
    return out

class Kern:
    def __init__(self, name, grid, block, lds, vgpr=256, agpr=0, sgpr=100):
        self.name=name; self.grid=grid; self.block=block; self.lds=lds
        self.vgpr=vgpr; self.agpr=agpr; self.sgpr=sgpr
        self.lines=[]; self.uid=0; self.variants=[{}]; self.loops=2
    def e(self, s):
        for t in s.split('\n'):
            t=t.rstrip()
            if not t.strip(): continue
            if t.strip().endswith(':') : self.lines.append(t.strip())
            else: self.lines.append('    '+t.strip())
    def c(self, s): self.lines.append('    ; '+s)
    def lab(self, base):
        self.uid+=1; return f"L_{self.name}_{base}_{self.uid}"
    def srd(self, s, base, nbytes):
        self.e(f"s_mov_b32 s{s}, s{base}\ns_mov_b32 s{s+1}, s{base+1}\ns_mov_b32 s{s+2}, {nbytes}\ns_mov_b32 s{s+3}, 0x00020000")
    def text(self):
        body=finalize(self.lines,self.name,variants=self.variants,loops=self.loops)
        kn=self.name+"_kernel" if not self.name.endswith("_kernel") else self.name
        s=f".globl {kn}\n.p2align 8\n.type {kn},@function\n{kn}:\n"+"\n".join(body)+"\n"
        return s
    def desc(self):
        kn=self.name+"_kernel" if not self.name.endswith("_kernel") else self.name
        acc=(self.vgpr+3)//4*4
        tot=acc+self.agpr if self.agpr else self.vgpr
        return f""".amdhsa_kernel {kn}
  .amdhsa_next_free_vgpr {tot}
  .amdhsa_next_free_sgpr {self.sgpr}
  .amdhsa_accum_offset {acc}
  .amdhsa_group_segment_fixed_size 0
  .amdhsa_kernarg_size 80
  .amdhsa_user_sgpr_count 2
  .amdhsa_user_sgpr_kernarg_segment_ptr 1
  .amdhsa_system_sgpr_workgroup_id_x 1
.end_amdhsa_kernel
"""
    def launch_line(self):
        kn=self.name+"_kernel" if not self.name.endswith("_kernel") else self.name
        return f"; @launch kernel={kn} grid=({self.grid},1,1) block=({self.block},1,1) lds={self.lds}"

HEADER = """; Fused pre-LN + softmax MHA (32 heads x 18) + bilinear GLU, gated:  out = x + attn(xn)*silu(ffn(xn))
"""
def build_file(kerns, launches=None, header=HEADER):
    launches=launches or kerns
    s=header
    for k in launches: s+=k.launch_line()+"\n"
    s+='.amdgcn_target "amdgcn-amd-amdhsa--gfx950"\n.text\n'
    for k in kerns: s+=k.text()+"\n"
    s+='.section .rodata,"a"\n.p2align 6\n'
    for k in kerns: s+=k.desc()
    return s

class Prof:
    def __init__(self, k, base, ws_srd_ptr, kid, enabled, nmax=6):
        self.k=k; self.base=base; self.n=0; self.en=enabled; self.kid=kid; self.ptr=ws_srd_ptr; self.nmax=nmax
    def stamp(self, real=False):
        if not self.en: return
        assert self.n<self.nmax
        b=self.base+2*self.n; self.n+=1
        self.k.e(f"s_memtime s[{b}:{b+1}]" if not real else f"s_memrealtime s[{b}:{b+1}]")
        self.k.e("s_waitcnt lgkmcnt(0)")
    def finish(self, s_wave, vt, s_tmp, srd, off):
        if not self.en: return
        e=self.k.e
        e(f"s_lshl_b32 s{s_tmp}, s2, 3\ns_add_u32 s{s_tmp}, s{s_tmp}, s{s_wave}\ns_lshl_b32 s{s_tmp}, s{s_tmp}, 7\ns_add_u32 s{s_tmp}, s{s_tmp}, {off+self.kid*0x100000}")
        e(f"s_mov_b32 s{srd+2}, 0x10000000")
        e(f"v_mov_b32 v{vt}, 0")
        for i in range(self.n):
            b=self.base+2*i
            e(f"v_mov_b32 v{vt+2}, s{b}\nv_mov_b32 v{vt+3}, s{b+1}")
            e(f"buffer_store_dwordx2 v[{vt+2}:{vt+3}], v{vt}, s[{srd}:{srd+3}], s{s_tmp} offen offset:{8*i}")
            e("s_waitcnt vmcnt(0)")


class LProf:
    def __init__(self,k,enabled,vaddr,vt,st,ldsbase,kid,nmax=32):
        self.k=k; self.en=enabled; self.va=vaddr; self.vt=vt; self.st=st; self.base=ldsbase; self.kid=kid; self.nmax=nmax
    def init(self,s_wave,stmp):
        if not self.en: return
        self.k.e(f"s_mul_i32 s{stmp}, s{s_wave}, {self.nmax*8}\ns_add_u32 s{stmp}, s{stmp}, {self.base}\nv_mov_b32 v{self.va}, s{stmp}")
    def stamp(self,real=False):
        if not self.en: return []
        st=self.st; vt=self.vt
        return [f"s_memrealtime s[{st}:{st+1}]" if real else f"s_memtime s[{st}:{st+1}]","s_waitcnt lgkmcnt(0)",
                f"v_mov_b32 v{vt}, s{st}",f"v_mov_b32 v{vt+1}, s{st+1}",f"ds_write_b64 v{self.va}, v[{vt}:{vt+1}]",
                f"v_add_u32 v{self.va}, 8, v{self.va}"]
    def estamp(self,real=False):
        for s in self.stamp(real): self.k.e(s)
    def finish(self,s_wave,stmp,srd,off,vlane,vt4):
        if not self.en: return
        e=self.k.e
        e("s_waitcnt lgkmcnt(0)")
        e(f"s_mul_i32 s{stmp}, s{s_wave}, {self.nmax*8}\ns_add_u32 s{stmp}, s{stmp}, {self.base}")
        e(f"v_lshlrev_b32 v{vt4}, 3, v{vlane}\nv_add_u32 v{vt4+1}, s{stmp}, v{vt4}")
        e(f"ds_read_b64 v[{vt4+2}:{vt4+3}], v{vt4+1}")
        e(f"s_lshl_b32 s{stmp}, s2, 3\ns_add_u32 s{stmp}, s{stmp}, s{s_wave}\ns_mul_i32 s{stmp}, s{stmp}, {self.nmax*8}\ns_add_u32 s{stmp}, s{stmp}, {off+self.kid*0x100000}")
        e(f"s_mov_b32 s{srd+2}, 0x10000000")
        e(f"v_cmp_gt_u32 vcc, {self.nmax}, v{vlane}\nv_mov_b32 v{vt4+1}, 0x80000000\nv_cndmask_b32 v{vt4}, v{vt4+1}, v{vt4}, vcc")
        e("s_waitcnt lgkmcnt(0)")
        e(f"buffer_store_dwordx2 v[{vt4+2}:{vt4+3}], v{vt4}, s[{srd}:{srd+3}], s{stmp} offen")
        e("s_waitcnt vmcnt(0)")
```

```python
import sys, os
sys.path.insert(0,"fz")
from base import *
import p0, p1
def build(prof=False, stop=99):
    F=Base(prof,stop)
    e=F.e
    p0.phase0(F)
    F.base_force={}
    if stop>=2:
        import p2
        F.hook=p2.Hook(F)
    if stop>=3:
        import p3
        F.hook3=p3.Hook3(F)
    if stop>=4:
        import p4
        F.hook4=p4.Hook4(F)
    p1.phase1(F)
    mods={}
    for i,(name,fn) in enumerate((("p2","phase2"),("p3","phase3"),("p4","phase4"))):
        if stop>=i+2:
            m=__import__(name); getattr(m,fn)(F)
    if prof:
        e("s_waitcnt vmcnt(0)")
        F.L.estamp(); F.L.estamp(real=True)
        F.L.finish(S_W,S_T0,S_WS,PROF_OFF,V_LANE,200)
    e("L_end:\ns_endpgm\nL_codeend:")
    base={"L_noep":True,"L_gotepa":True,"L_gotepb":True}
    base.update(F.base_force)
    vs=[]
    for wv in (1,2,3):
        w3=wv==3
        for cls in range(4):
            v=dict(base); v.update({"L_skipx":w3,"L_dma":w3,"L_join":True,"L_dma_s":cls>=2,"L_dma_j0":cls==3,"L_dfs":cls>=2,"L_tfs":cls>=2,"L_tfx":cls==3,"L_dfx":cls==3,
                "L_ldscx":True,"L_ldsbx":True,"L_notch2":wv!=2,"L_notch3":wv!=2,"L_noflag":wv==1,"L_cls1":cls==1,"L_cls2":cls==2,"L_cls3":cls==3})
            for x in getattr(F,'vforce',[{}]):
                vv=dict(v); vv.update(x); vs.append(vv)
    F.k.variants=vs
    return F.k
if __name__=="__main__":
    out=sys.argv[1]; stop=int(sys.argv[2]) if len(sys.argv)>2 else 99
    k=build(bool(os.environ.get("PROF")),stop)
    txt=build_file([k])
    if os.environ.get("FINAL"):
        KN="recurrent_scan__softmax_full_mha__glu_gated_bilinear__prompt_kernel"
        txt=txt.replace("; @launch kernel=fused_kernel grid","; @launch grid").replace("fused_kernel",KN)
    open(out,"w").write(txt)
```

```python
import sys
sys.path.insert(0,"gen")
from asmlib import *
from lay import *

MF="v_mfma_f32_32x32x16_bf16"
MF16="v_mfma_f32_16x16x32_bf16"
P_X,P_WQKV,P_WO,P_WG,P_WU,P_WD,P_OUT,P_DBG,P_WS=4,6,8,12,14,16,18,20,22
S_WS=24
S_W,S_B,S_X,S_R=28,29,30,31
S_EP=32
S_T0,S_T1,S_T2=34,35,36
S_CLS=37
S_PROF=98
V_LANE,V_FLG,V_XO=208,209,210
V_PA,V_PT=220,222
def r2(b,c='v'): return f"{c}[{b}:{b+1}]"
def r4(b,c='v'): return f"{c}[{b}:{b+3}]"
def r16(b,c='v'): return f"{c}[{b}:{b+15}]"

def spread(fill, ops, lo, hi):
    n=len(ops)
    if n==0: return
    w=hi-lo
    for i,o in enumerate(ops):
        s=lo+(i*w)//n
        if isinstance(o,str): fill[s].append(o)
        else: fill[s].extend(o)

class Base:
    def __init__(self, prof=False, stop=99):
        self.k=Kern("fused", grid=256, block=256, lds=LDS_TOTAL, vgpr=256, agpr=256, sgpr=100)
        self.prof=prof; self.stop=stop
        self.L=LProf(self.k, prof, V_PA, V_PT, S_PROF, LDS_PROF, 0, nmax=64)
        self.e=self.k.e
        self.nlab=0
        import os
        self.fine=bool(os.environ.get('FINE'))
        self.vforce=[{}]
        if os.environ.get('DBGT'):
            import inspect
            mp={}
            for i,x in enumerate(os.environ['DBGT'].split(',')): mp[x]=2+i
            e=self.k.e
            def est(real=False):
                fr=inspect.stack()[1]; key=os.path.basename(fr.filename)[:2]+":"+str(fr.lineno)
                if real or key not in mp: return
                w=mp[key]
                wg=int(os.environ.get("DWG","37"))
                if w==2: e(f"s_cmp_eq_u32 s2, {wg}\ns_cselect_b32 s98, 0, 0x80000000\nv_or_b32 v223, s98, v{V_FLG}")
                e(f"s_memrealtime s[98:99]\ns_waitcnt lgkmcnt(0)\nv_mov_b32 v222, s98\nbuffer_store_dword v222, v223, s[84:87], 0 offen offset:{4*w} sc1")
            self.L.estamp=est
    def lab(self,s):
        self.nlab+=1; return f"L_{s}_{self.nlab}"
    def flag_store(self, ph, vt):
        return [f"v_mov_b32 v{vt}, s{S_EP}", f"v_mov_b32 v{vt+1}, s{S_EP+1}",
                f"s_lshl_b32 s{S_T0}, s2, 7", f"s_add_u32 s{S_T0}, s{S_T0}, {FLAG_OFF+ph*FLAG_PH}",
                f"buffer_store_dwordx2 v[{vt}:{vt+1}], v{V_FLG}, s[{S_WS}:{S_WS+3}], s{S_T0} offen sc1"]
    def poll_ops(self, vaddrs, soff, vt):
        l=[]; old=self.e; self.e=l.append
        self.poll(vaddrs,soff,vt); self.e=old
        return l
    def poll(self, vaddrs, soff, vt):
        nload=len(vaddrs)
        e=self.e; L=self.lab("poll"); D=self.lab("polld")
        e(f"s_mov_b32 s{S_T2}, 0")
        e(f"{L}:")
        for i in range(nload):
            e(f"buffer_load_dwordx2 v[{vt+2*i}:{vt+2*i+1}], v{vaddrs[i]}, s[{S_WS}:{S_WS+3}], s{soff} offen sc1")
        for i in range(nload):
            if i==0: e(f"v_cmp_ne_u64 vcc, s[{S_EP}:{S_EP+1}], v[{vt}:{vt+1}]")
            else:
                e(f"v_cmp_ne_u64 s[96:97], s[{S_EP}:{S_EP+1}], v[{vt+2*i}:{vt+2*i+1}]")
                e(f"s_or_b64 vcc, vcc, s[96:97]")
        e(f"s_add_u32 s{S_T2}, s{S_T2}, 1")
        e(f"s_cbranch_vccz {D}")
        e(f"s_cmp_lt_u32 s{S_T2}, 0x20000")
        e(f"s_cbranch_scc1 {L}")
        e(f"{D}:")
```

```python
from base import *
import p2
from p2 import RING
SLOT=36864
ACC=[0,16,32,48,128,144,160,176,192]
HB=32
ARING=176; NR=8; PD=6
V_D=72
V_TRP=81; V_SL=[82,83,84,85]
V_PO=86; V_FA=87; V_POLL=88
ET=96
S_WD=48
S_PFO,S_PFL=52,53
S_HG=54
S_TB,S_DH=55,56
S_PS=57
S_FO=58
def hreg(ks): return f"a[{HB+4*ks}:{HB+4*ks+3}]"
def af(n): return ARING+4*(n%NR)
def rd(n, slot, m):
    b=af(n); o=(m//3)*3072+(m%3)*64
    return [f"ds_read_b64_tr_b16 a[{b}:{b+1}], v{V_SL[slot]} offset:{o}",
            f"ds_read_b64_tr_b16 a[{b+2}:{b+3}], v{V_SL[slot]} offset:{o+1536}"]
def wdma(j):
    slot=j%4; tag=f"w{slot}"
    l=[]
    for i in range(9):
        g=[f"s_add_u32 m0, s{S_PFL}, {RING[slot]+1024*i}",
           f"buffer_load_dwordx4 v{V_D+i}, s[{S_WD}:{S_WD+3}], s{S_PFO} offen lds ; tag:{tag}"]
        if i==8:
            if j%3<2: g.append(f"s_add_u32 s{S_PFO}, s{S_PFO}, {192*1152}")
            else: g.append(f"s_sub_u32 s{S_PFO}, s{S_PFO}, {2*192*1152-192}")
        l.append(g)
    return l
def clear_ops():
    ops=[]
    for dt in range(9):
        for hf in range(2):
            g=[f"s_add_u32 s{S_T0}, s{S_PS}, {dt*1024}"] if hf==0 else []
            g.append(f"buffer_store_dwordx4 v[{ET}:{ET+3}], v{V_PO}, s[{S_WS}:{S_WS+3}], s{S_T0} offen offset:{hf*512} sc1 ; tag:o")
            ops.append(g)
    return ops
def epi(g):
    ops=[]
    for dt in range(3*g,3*g+3):
        a=ACC[dt]; b=ET+8*(dt%2)
        for j,o in enumerate((0,2,8,10,4,6,12,14)):
            ops.append(f"v_cvt_pk_bf16_f32 v{b+j}, v{a+o}, v{a+o+1}")
            if j==3 or j==7:
                hf=j//4
                ops.append(f"buffer_store_dwordx4 v[{b+4*hf}:{b+4*hf+3}], v{V_PO}, s[{S_WS}:{S_WS+3}], s{S_PS} offen offset:{hf*512} sc1")
        ops.append(f"s_add_u32 s{S_PS}, s{S_PS}, 1024")
    return ops
def hload(ks):
    g=[f"buffer_load_dwordx4 {hreg(ks)}, v{V_XO}, s[{S_WS}:{S_WS+3}], s{S_HG} offen offset:{(ks%4)*1024} sc1"]
    if ks%4==3: g.append(f"s_add_u32 s{S_HG}, s{S_HG}, 4096")
    return g

class Hook3:
    def __init__(self,F): self.F=F
    def setup(self):
        L=V_LANE; T=90
        s=f"""
        s_mov_b32 s{S_WD}, s{P_WD}
        s_mov_b32 s{S_WD+1}, s{P_WD+1}
        s_mov_b32 s{S_WD+2}, {4608*1152}
        s_mov_b32 s{S_WD+3}, 0x00020000
        s_lshl_b32 s{S_T0}, s{S_B}, 5
        s_add_u32 s{S_T0}, s{S_T0}, s{S_X}
        s_lshl_b32 s{S_T0}, s{S_T0}, 7
        s_add_u32 s{S_FO}, s{S_T0}, {FLAG_OFF+2*FLAG_PH}
        v_and_b32 v{T}, 3, v{L}
        v_lshlrev_b32 v{V_FA}, 10, v{T}
        buffer_load_dwordx2 v[{V_POLL}:{V_POLL+1}], v{V_FA}, s[{S_WS}:{S_WS+3}], s{S_FO} offen sc1
        s_lshr_b32 s{S_TB}, s2, 4
        s_bfe_u32 s{S_DH}, s2, 0x10003
        s_mul_i32 s{S_PFO}, s{S_X}, {576*1152}
        s_mul_i32 s{S_T0}, s{S_DH}, 576
        s_add_u32 s{S_PFO}, s{S_PFO}, s{S_T0}
        s_mul_i32 s{S_T0}, s{S_W}, {48*1152}
        s_add_u32 s{S_PFO}, s{S_PFO}, s{S_T0}
        s_mul_i32 s{S_PFL}, s{S_W}, 9216
        s_lshl_b32 s{S_T0}, s{S_TB}, 2
        s_add_u32 s{S_T0}, s{S_T0}, s{S_W}
        s_mul_i32 s{S_HG}, s{S_T0}, {288*1024}
        s_mul_i32 s{S_T1}, s{S_X}, {36*1024}
        s_add_u32 s{S_HG}, s{S_HG}, s{S_T1}
        s_add_u32 s{S_HG}, s{S_HG}, {HF_OFF}
        s_mul_i32 s{S_PS}, s{S_T0}, {2*18432}
        s_mul_i32 s{S_T1}, s{S_X}, {PART_CH}
        s_add_u32 s{S_PS}, s{S_PS}, s{S_T1}
        s_mul_i32 s{S_T1}, s{S_DH}, {9*1024}
        s_add_u32 s{S_PS}, s{S_PS}, s{S_T1}
        s_add_u32 s{S_PS}, s{S_PS}, {PART_OFF}
        """
        sc=[x.strip() for x in s.strip().split('\n')]
        v=[]
        for i in range(3):
            v+=[x.strip() for x in f"""
            v_add_u32 v{T}, {64*i}, v{L}
            v_mul_u32_u24 v{T+1}, 5462, v{T}
            v_lshrrev_b32 v{T+1}, 16, v{T+1}
            v_mul_u32_u24 v{T+2}, 12, v{T+1}
            v_sub_u32 v{T+2}, v{T}, v{T+2}
            v_mul_u32_u24 v{T+1}, 1152, v{T+1}
            v_lshl_add_u32 v{V_D+i}, v{T+2}, 4, v{T+1}
            v_add_u32 v{V_D+i+3}, {16*1152}, v{V_D+i}
            v_add_u32 v{V_D+i+6}, {32*1152}, v{V_D+i}
            """.strip().split('\n')]
        v+=[f"v_mov_b32 v{ET+i}, -1" for i in range(4)]
        return sc,v
    def setup2(self):
        L=V_LANE; T=90
        s=f"""
        v_lshrrev_b32 v{T}, 5, v{L}
        v_bfe_u32 v{T+1}, v{L}, 2, 2
        v_lshl_add_u32 v{T+2}, v{T}, 2, v{T+1}
        v_mul_u32_u24 v{T+2}, 192, v{T+2}
        v_bfe_u32 v{T+3}, v{L}, 4, 1
        v_lshl_add_u32 v{T+2}, v{T+3}, 5, v{T+2}
        v_and_b32 v{T+4}, 3, v{L}
        v_lshl_add_u32 v{V_TRP}, v{T+4}, 3, v{T+2}
        v_add_u32 v{V_SL[0]}, {RING[0]}, v{V_TRP}
        v_add_u32 v{V_SL[1]}, {RING[1]}, v{V_TRP}
        v_add_u32 v{V_SL[2]}, {RING[2]}, v{V_TRP}
        v_add_u32 v{V_SL[3]}, {RING[3]}, v{V_TRP}
        v_mul_u32_u24 v{T+3}, 18432, v{T+3}
        v_and_b32 v{T+4}, 15, v{L}
        v_lshl_add_u32 v{T+3}, v{T+4}, 4, v{T+3}
        v_lshl_add_u32 v{V_PO}, v{T}, 8, v{T+3}
        """
        return [x.strip() for x in s.strip().split('\n')]
    def att_tail(self, chunk, dma_chunk):
        F=self.F; e=F.e
        chk=[f"v_cmp_ne_u64 vcc, s[{S_EP}:{S_EP+1}], v[{V_POLL}:{V_POLL+1}]","s_cbranch_vccz L_f2ok"]+F.poll_ops([V_FA],S_FO,V_POLL)+["L_f2ok:"]
        d0=wdma(0); d1=wdma(1)
        def place(ex,groups,lo,hi):
            n=len(groups)
            for i,g in enumerate(groups):
                p=lo+(i*(hi-lo))//n
                ex[p//8].setdefault(p%8,[]); ex[p//8][p%8]+=(g if isinstance(g,list) else [g])
        hl=[hload(ks) for ks in range(36)]
        cl=clear_ops()
        sc,v=self.setup()
        ex={t:{} for t in range(8)}
        place(ex,sc,0,22)
        place(ex,v+self.setup2(),22,58)
        place(ex,[chk],40,41)
        place(ex,hl[:6],46,64)
        chunk(F,'mid',dmas=dma_chunk("kv6"),bar_ops=["s_barrier ; need:kv"],extras=ex)
        ex={t:{} for t in range(8)}
        place(ex,hl[6:16],24,64)
        place(ex,cl[:6],26,62)
        chunk(F,'mid',dmas=dma_chunk("kv7"),bar_ops=["s_barrier ; need:kv6"],extras=ex)
        ex={t:{} for t in range(8)}
        place(ex,d0,1,40)
        place(ex,hl[16:26],4,62)
        place(ex,cl[6:12],10,60)
        chunk(F,'mid',bar_ops=["s_barrier ; need:kv7"],extras=ex)
        ex={t:{} for t in range(8)}
        place(ex,hl[26:],0,50)
        place(ex,d1,2,56)
        place(ex,cl[12:],6,58)
        chunk(F,'last',bar_ops=["s_barrier"],extras=ex)
        F.base_force.update({"L_f2ok":True}); F.vforce+=[{"L_f2ok":False}]

def interval(F, j, dmas=(), need=None, after_bar=None, extra=None, last=False):
    e=F.e
    slot=j%4; nslot=(j+1)%4
    g,kr=divmod(j,3)
    mf=[]
    for m in range(36):
        kl,dtl=divmod(m,3); ks=12*kr+kl; a=ACC[3*g+dtl]
        c="0" if ks==0 else r16(a)
        b=af(36*j+m)
        mf.append(f"{MF} {r16(a)}, a[{b}:{b+3}], {hreg(ks)}, {c}")
    fill=[[] for _ in range(36)]
    fill[0]+=["s_barrier"+(f" ; need:{need}" if need else "")]
    if after_bar: fill[0]+=after_bar
    for n in range(36):
        m=n+PD
        if m<36: fill[n]+=rd(36*j+m,slot,m)
        elif not last: fill[n]+=rd(36*j+m,nslot,m-36)
    if dmas:
        for i,gp in enumerate(dmas):
            p=1+(i*33)//len(dmas)
            fill[p]+=gp[:1]; fill[p+1]+=gp[1:]
    if extra:
        for (ops,lo,hi) in extra: spread(fill,ops,lo,hi)
    if F.fine: fill[35]+=F.L.stamp()
    for i in range(36):
        e(mf[i])
        for s in fill[i]: e(s)

def phase3(F):
    e=F.e
    H4=getattr(F,'hook4',None)
    e("s_barrier ; need:w0")
    for n in range(PD):
        for s in rd(n,0,n): e(s)
    F.L.estamp()
    for j in range(9):
        dm=wdma(j+3) if j+3<=8 else []
        need=f"w{(j+1)%4}" if j<8 else None
        ab=None; ex=[]
        if j==0:
            ex+= [(wdma(2),1,17),(dm,17,35)]; dm=[]
        if j==1: need+=" need:o"; ab=F.flag_store(3,V_POLL)
        if j==3: ex.append((epi(0),4,34))
        if j==6: ex.append((epi(1),4,34))
        if H4:
            d4,ex4,pre=H4.p3(j)
            if pre: pre()
            if d4: dm=d4
            if ex4: ex+=ex4
        interval(F,j,dmas=dm,need=need,after_bar=ab,extra=ex,last=(j==8))
    F.L.estamp()
    for s in epi(2): e(s)
    F.L.estamp()
```

```python
from base import *
import p3
WO_BASE=55296
V_WM=112
V_WR=117
V_TR4,V_RO,V_R4,V_FA4=120,121,122,123
V_POLL=124
XR=64
X4=126
S_WO=60
S_XO=64
S_OUT=68
S_CS=72
S_OG=73
S_RB=74
S_PG=75
S_WG,S_WL=76,77
S_RG,S_RL=78,79
S_RI=40
S_FO3,S_FO4=43,44
S_ISB=45
S_D0,S_D1,S_D2=46,47,59
S_PG1,S_PG4=80,81
LT=128
ARING=p3.ARING; NR=p3.NR
SACC=224
F6=160
SEL=[96,100]
SEL5=104
TS=108
E0R,E4R=0,32
CK=180
T=32
def ofr(ks):
    b=4*ks if ks<8 else 208+4*(ks-8)
    return f"a[{b}:{b+3}]"

class Hook4:
    def __init__(self,F): self.F=F
    def setup(self):
        L=V_LANE; t=90
        s=f"""
        s_mov_b32 s{S_WO}, s{P_WO}
        s_mov_b32 s{S_WO+1}, s{P_WO+1}
        s_mov_b32 s{S_WO+2}, {576*1152}
        s_mov_b32 s{S_WO+3}, 0x00020000
        s_mov_b32 s{S_XO}, s{P_X}
        s_mov_b32 s{S_XO+1}, s{P_X+1}
        s_mov_b32 s{S_XO+2}, {2048*1152}
        s_mov_b32 s{S_XO+3}, 0x00020000
        s_mov_b32 s{S_OUT}, s{P_OUT}
        s_mov_b32 s{S_OUT+1}, s{P_OUT+1}
        s_mov_b32 s{S_OUT+2}, {2048*1152}
        s_mov_b32 s{S_OUT+3}, 0x00020000
        s_lshr_b32 s{S_T0}, s{S_X}, 1
        s_and_b32 s{S_ISB}, s{S_T0}, 1
        s_add_u32 s{S_T1}, s{S_T0}, 6
        s_cmp_eq_u32 s{S_T0}, 3
        s_cselect_b32 s{S_T1}, 5, s{S_T1}
        s_lshl_b32 s{S_D0}, s{S_T0}, 6
        s_lshl_b32 s{S_D1}, s{S_T1}, 6
        s_lshl_b32 s{S_D2}, s{S_ISB}, 5
        s_add_u32 s{S_D2}, s{S_D2}, 256
        s_lshl_b32 s{S_PG}, s{S_T0}, 10
        s_lshl_b32 s{S_PG1}, s{S_T1}, 10
        s_bfe_u32 s{S_T2}, s2, 0x10003
        s_mul_i32 s{S_CS}, s{S_T2}, 576
        s_mul_i32 s{S_T2}, s{S_T2}, 9216
        s_lshr_b32 s{S_T0}, s2, 4
        s_lshl_b32 s{S_T0}, s{S_T0}, 3
        s_and_b32 s{S_T1}, s{S_X}, 1
        s_lshl_b32 s{S_T1}, s{S_T1}, 2
        s_add_u32 s{S_T0}, s{S_T0}, s{S_T1}
        s_add_u32 s{S_T0}, s{S_T0}, s{S_W}
        s_mul_i32 s{S_T1}, s{S_T0}, 18432
        s_add_u32 s{S_OG}, s{S_T1}, {OF_OFF}
        s_add_u32 s{S_T2}, s{S_T2}, s{S_T1}
        s_add_u32 s{S_T2}, s{S_T2}, {PART_OFF}
        s_add_u32 s{S_PG}, s{S_PG}, s{S_T2}
        s_add_u32 s{S_PG1}, s{S_PG1}, s{S_T2}
        s_add_u32 s{S_PG4}, s{S_T2}, 4096
        s_mul_i32 s{S_RB}, s{S_T0}, {16*1152}
        s_add_u32 s{S_RB}, s{S_RB}, s{S_CS}
        s_add_u32 s{S_T0}, s{S_W}, 12
        s_mul_i32 s{S_WG}, s{S_T0}, {36*1152}
        s_add_u32 s{S_WG}, s{S_WG}, s{S_CS}
        s_mul_i32 s{S_WL}, s{S_T0}, 5120
        s_add_u32 s{S_WL}, s{S_WL}, {WO_BASE}
        s_and_b32 s{S_T0}, s{S_W}, 1
        s_mul_i32 s{S_RG}, s{S_T0}, {288*1152}
        s_add_u32 s{S_RG}, s{S_RG}, s{S_CS}
        s_add_u32 s{S_T0}, s{S_T0}, 16
        s_mul_i32 s{S_RL}, s{S_T0}, 5120
        s_add_u32 s{S_RL}, s{S_RL}, {WO_BASE}
        s_lshl_b32 s{S_T0}, s{S_B}, 12
        s_add_u32 s{S_FO3}, s{S_T0}, {FLAG_OFF+3*FLAG_PH}
        s_lshr_b32 s{S_T0}, s2, 3
        s_lshl_b32 s{S_T0}, s{S_T0}, 10
        s_add_u32 s{S_FO4}, s{S_T0}, {FLAG_OFF+4*FLAG_PH}
        """
        ops=[x.strip() for x in s.strip().split('\n') if x.strip()]
        g=[]; i=0
        while i<len(ops):
            if ops[i].startswith("s_cmp"): g.append([ops[i],ops[i+1]]); i+=2
            else: g.append(ops[i]); i+=1
        ops=g
        v=[]
        def cold(dst):
            return [[f"v_mov_b32 v{t+4}, s{S_D0}", f"v_mov_b32 v{t+1}, s{S_D1}", f"v_cmp_lt_u32 vcc, 3, v{t+2}", f"v_cndmask_b32 v{t+4}, v{t+4}, v{t+1}, vcc"],
                    [f"v_mov_b32 v{t+1}, s{S_D2}", f"v_cmp_lt_u32 vcc, 7, v{t+2}", f"v_cndmask_b32 v{t+4}, v{t+4}, v{t+1}, vcc"],
                    f"v_and_b32 v{t+2}, 3, v{t+2}", f"v_add_u32 v{t+3}, v{t+3}, v{t+4}", f"v_lshl_add_u32 v{dst}, v{t+2}, 4, v{t+3}"]
        for i in range(5):
            v+= [f"v_add_u32 v{t}, {64*i}, v{L}", f"v_mul_u32_u24 v{t+1}, 6554, v{t}", f"v_lshrrev_b32 v{t+1}, 16, v{t+1}",
                 f"v_mul_u32_u24 v{t+2}, 10, v{t+1}", f"v_sub_u32 v{t+2}, v{t}, v{t+2}",
                 f"v_bfe_u32 v{t+3}, v{t+1}, 3, 1", f"v_mul_u32_u24 v{t+3}, 18, v{t+3}",
                 f"v_lshrrev_b32 v{t+4}, 4, v{t+1}", f"v_lshl_add_u32 v{t+3}, v{t+4}, 3, v{t+3}",
                 f"v_bfe_u32 v{t+4}, v{t+1}, 2, 1", f"v_lshl_add_u32 v{t+3}, v{t+4}, 2, v{t+3}",
                 f"v_and_b32 v{t+4}, 3, v{t+1}", f"v_add_u32 v{t+3}, v{t+3}, v{t+4}",
                 f"v_mul_u32_u24 v{t+3}, 1152, v{t+3}"]+cold(V_WM+i)
        for rho in range(3):
            v+= [[f"s_cmp_lt_u32 s{S_W}, 2", f"s_cselect_b32 s{S_T0}, {rho}, {min(3+rho,4)}", f"s_lshl_b32 s{S_T1}, s{S_T0}, 10",
                  f"s_add_u32 s{S_RI+rho}, s{S_RL}, s{S_T1}", f"s_lshl_b32 s{S_T0}, s{S_T0}, 6", f"v_add_u32 v{t}, s{S_T0}, v{L}"],
                 f"v_mul_u32_u24 v{t+1}, 6554, v{t}", f"v_lshrrev_b32 v{t+1}, 16, v{t+1}",
                 f"v_mul_u32_u24 v{t+2}, 10, v{t+1}", f"v_sub_u32 v{t+2}, v{t}, v{t+2}",
                 f"v_bfe_u32 v{t+3}, v{t+1}, 2, 2", f"v_mul_u32_u24 v{t+3}, 72, v{t+3}",
                 f"v_lshrrev_b32 v{t+4}, 4, v{t+1}", f"v_mul_u32_u24 v{t+4}, 36, v{t+4}", f"v_add_u32 v{t+3}, v{t+3}, v{t+4}",
                 f"v_bfe_u32 v{t+4}, v{t+1}, 1, 1", f"v_mul_u32_u24 v{t+4}, 18, v{t+4}", f"v_add_u32 v{t+3}, v{t+3}, v{t+4}",
                 f"v_and_b32 v{t+4}, 1, v{t+1}", f"v_add_u32 v{t+3}, v{t+3}, v{t+4}", f"v_add_u32 v{t+3}, 16, v{t+3}",
                 f"v_mul_u32_u24 v{t+3}, 1152, v{t+3}"]+cold(V_WR+rho)
        v+= [f"v_lshrrev_b32 v{t}, 4, v{L}", f"v_bfe_u32 v{t+1}, v{L}, 2, 2", f"v_lshl_add_u32 v{t+2}, v{t}, 2, v{t+1}",
             f"v_mul_u32_u24 v{t+2}, 160, v{t+2}", f"v_and_b32 v{t+1}, 3, v{L}", f"v_lshl_add_u32 v{t+2}, v{t+1}, 3, v{t+2}",
             f"v_add_u32 v{V_TR4}, {WO_BASE}, v{t+2}",
             f"v_and_b32 v{t+1}, 15, v{L}", f"v_mul_u32_u24 v{t+1}, 1152, v{t+1}", f"v_lshl_add_u32 v{V_R4}, v{t}, 3, v{t+1}",
             f"v_and_b32 v{t+2}, 1, v{t}", f"v_lshl_add_u32 v{t+1}, v{t+2}, 5, v{t+1}", f"v_lshrrev_b32 v{t+2}, 1, v{t}",
             f"v_lshl_add_u32 v{V_RO}, v{t+2}, 4, v{t+1}",
             f"v_and_b32 v{t+1}, 31, v{L}", f"v_lshlrev_b32 v{V_FA4}, 7, v{t+1}"]
        return ops,v
    def wo_main(self,tag):
        l=[]
        for i in range(5):
            g=[f"s_add_u32 m0, s{S_WL}, {1024*i}",
               f"buffer_load_dwordx4 v{V_WM+i}, s[{S_WO}:{S_WO+3}], s{S_WG} offen lds ; tag:{tag}"]
            if i==4: g+=[f"s_sub_u32 s{S_WL}, s{S_WL}, {4*5120}", f"s_sub_u32 s{S_WG}, s{S_WG}, {4*36*1152}"]
            l.append(g)
        return l
    def wo_rem(self,tag):
        return [[f"s_mov_b32 m0, s{S_RI+r}", f"buffer_load_dwordx4 v{V_WR+r}, s[{S_WO}:{S_WO+3}], s{S_RG} offen lds ; tag:{tag}"] for r in range(3)]
    def p3(self,j):
        F=self.F
        if j==1:
            s,v=self.setup(); self.v=v
            return None,[(s,2,35)],None
        if j==2:
            n=len(self.v)//2
            return None,[(self.v[:n],1,36)],None
        if j==3:
            n=len(self.v)//2
            fin=[f"s_add_u32 s{S_D0}, s{S_D0}, s{S_RB}", f"s_add_u32 s{S_D1}, s{S_D1}, s{S_RB}", f"s_add_u32 s{S_D2}, s{S_D2}, s{S_RB}"]
            return None,[(self.v[n:],1,30),(fin,33,35)],None
        def oload(order):
            l=[]
            for ks in order:
                l.append([f"s_add_u32 s{S_T1}, s{S_OG}, {(ks//4)*4096}",
                          f"buffer_load_dwordx4 {ofr(ks)}, v{V_XO}, s[{S_WS}:{S_WS+3}], s{S_T1} offen offset:{(ks%4)*1024} sc1"])
            return l
        if j==4:
            return None,[([f"buffer_load_dwordx2 v[{V_POLL}:{V_POLL+1}], v{V_FA4}, s[{S_WS}:{S_WS+3}], s{S_FO3} offen sc1"],20,21)],None
        if j==5:
            def pre():
                e=F.e
                e(f"v_cmp_ne_u64 vcc, s[{S_EP}:{S_EP+1}], v[{V_POLL}:{V_POLL+1}]")
                e("s_cbranch_vccz L_f3ok")
                F.poll([V_FA4],S_FO3,V_POLL)
                e("L_f3ok:")
            F.base_force.update({"L_f3ok":True}); F.vforce+=[{"L_f3ok":False}]
            return None,[(early_loads(E0R,S_PG),3,35)],pre
        if j==6: return self.wo_main("woA")+self.wo_rem("woA"),[(oload([12,13,14,15]),6,34)],None
        if j==7: return self.wo_main("woA")+self.wo_main("woA"),[(oload([16,17,4,5,6,7,8,9]),3,35)],None
        if j==8:
            x=[f"buffer_load_dwordx4 v[{XR}:{XR+3}], v{V_RO}, s[{S_XO}:{S_XO+3}], s{S_D0} offen",
               f"buffer_load_dwordx4 v[{XR+4}:{XR+7}], v{V_RO}, s[{S_XO}:{S_XO+3}], s{S_D1} offen",
               f"buffer_load_dwordx2 v[{X4}:{X4+1}], v{V_R4}, s[{S_XO}:{S_XO+3}], s{S_D2} offen"]
            return None,[(self.wo_main("woB"),1,15),(oload([10,11,0,1,2,3]),4,28),(x,28,35)],None
        return None,None,None

def early_loads(reg,sreg):
    l=[]
    for c in range(8):
        l.append([f"s_add_u32 s{S_T0}, s{sreg}, {c*PART_CH}",
                  f"buffer_load_dwordx4 v[{reg+4*c}:{reg+4*c+3}], v{V_XO}, s[{S_WS}:{S_WS+3}], s{S_T0} offen sc1"])
    return l
def sent_check(e,F,name,reg,sreg):
    e(f"s_mov_b32 s{S_T2}, 0")
    e(f"L_{name}chk:")
    e(f"v_max3_u32 v{CK}, v{reg}, v{reg+1}, v{reg+2}\nv_max3_u32 v{CK+1}, v{reg+3}, v{reg+4}, v{reg+5}")
    for i in range(6,32,4):
        if i+3<32: e(f"v_max3_u32 v{CK}, v{CK}, v{reg+i}, v{reg+i+1}\nv_max3_u32 v{CK+1}, v{CK+1}, v{reg+i+2}, v{reg+i+3}")
        else: e(f"v_max3_u32 v{CK}, v{CK}, v{reg+i}, v{reg+i+1}")
    e(f"v_max_u32 v{CK}, v{CK}, v{CK+1}")
    e(f"v_cmp_eq_u32 vcc, -1, v{CK}")
    e(f"s_cbranch_vccz L_{name}ok")
    for g in early_loads(reg,sreg):
        for x in g: e(x)
    e(f"s_add_u32 s{S_T2}, s{S_T2}, 1\ns_cmp_lt_u32 s{S_T2}, 0x8000\ns_cbranch_scc1 L_{name}chk")
    e(f"L_{name}ok:")
    F.base_force.update({f"L_{name}ok":True}); F.vforce+=[{f"L_{name}ok":False}]

def phase4(F):
    e=F.e; L=V_LANE
    order=list(range(12,18))+list(range(4,12))+list(range(4))
    seq=[(ks,s) for ks in order for s in range(5)]
    PD=6
    def rd(n):
        ks,s=seq[n]; b=ARING+4*(n%NR); o=ks*5120+s*32
        base=V_TR4
        if o+2560>65535: base=V_WM; o-=46080
        return [f"ds_read_b64_tr_b16 a[{b}:{b+1}], v{base} offset:{o}", f"ds_read_b64_tr_b16 a[{b+2}:{b+3}], v{base} offset:{o+2560}"]
    e("s_barrier ; need:woA")
    e(f"v_add_u32 v{V_WM}, 46080, v{V_TR4}")
    for n in range(PD):
        for s in rd(n): e(s)
    first=set()
    nB=14*5
    e4=early_loads(E4R,S_PG4)
    import os
    E0=int(os.environ.get("E0","4")); ES=int(os.environ.get("ES","8"))
    T=TS
    for n,(ks,s) in enumerate(seq):
        b=ARING+4*(n%NR); a=SACC+4*s
        c="0" if s not in first else f"v[{a}:{a+3}]"; first.add(s)
        e(f"{MF16} v[{a}:{a+3}], a[{b}:{b+3}], {ofr(ks)}, {c}")
        if n+PD==nB: e("s_barrier ; need:woB")
        if n+PD<90:
            for x in rd(n+PD): e(x)
        if n>=E0 and (n-E0)%ES==0 and (n-E0)//ES<8:
            for x in e4[(n-E0)//ES]: e(x)
        if n==6:
            e(f"""
            v_lshrrev_b32 v{T}, 4, v{L}
            v_bfe_u32 v{T+1}, v{L}, 2, 2
            v_cmp_eq_u32 vcc, v{T}, v{T+1}
            v_and_b32 v{T+2}, 1, v{L}
            v_lshlrev_b32 v{T+2}, 4, v{T+2}
            v_mov_b32 v{T+3}, 0x3f80
            v_lshlrev_b32 v{T+3}, v{T+2}, v{T+3}
            v_cndmask_b32 v{T+3}, 0, v{T+3}, vcc
            v_bfe_u32 v{T+2}, v{L}, 1, 1
            v_cmp_eq_u32 vcc, 0, v{T+2}
            v_cndmask_b32 v{SEL[0]}, 0, v{T+3}, vcc
            v_cndmask_b32 v{SEL[0]+1}, v{T+3}, 0, vcc
            v_mov_b32 v{SEL[0]+2}, 0
            v_mov_b32 v{SEL[0]+3}, 0
            v_mov_b32 v{SEL[1]}, 0
            v_mov_b32 v{SEL[1]+1}, 0
            v_mov_b32 v{SEL[1]+2}, v{SEL[0]}
            v_mov_b32 v{SEL[1]+3}, v{SEL[0]+1}
            """)
        if n==9:
            e(f"s_cmp_eq_u32 s{S_ISB}, 0\ns_cselect_b64 vcc, -1, 0")
            for i in range(4): e(f"v_cndmask_b32 v{SEL5+i}, v{SEL[1]+i}, v{SEL[0]+i}, vcc")
    F.L.estamp()
    for g in early_loads(LT,S_PG1):
        for x in g: e(x)
    for m in range(2):
        x=XR+4*m
        e(f"v_permlane16_swap_b32 v{x}, v{x+2}\nv_permlane16_swap_b32 v{x+1}, v{x+3}")
    sent_check(e,F,"e0",E0R,S_PG)
    for c in range(8):
        b=E0R+4*c
        for hf in range(2):
            a=F6+4*hf
            e(f"{MF16} v[{a}:{a+3}], v[{SEL[hf]}:{SEL[hf]+3}], v[{b}:{b+3}], {'0' if c==0 else f'v[{a}:{a+3}]'}")
    sent_check(e,F,"e4",E4R,S_PG4)
    for c in range(8):
        b=E4R+4*c; a=F6+16
        e(f"{MF16} v[{a}:{a+3}], v[{SEL5}:{SEL5+3}], v[{b}:{b+3}], {'0' if c==0 else f'v[{a}:{a+3}]'}")
    F.L.estamp()
    sent_check(e,F,"l",LT,S_PG1)
    for c in range(8):
        b=LT+4*c
        for hf in range(2):
            a=F6+8+4*hf
            e(f"{MF16} v[{a}:{a+3}], v[{SEL[hf]}:{SEL[hf]+3}], v[{b}:{b+3}], {'0' if c==0 else f'v[{a}:{a+3}]'}")
    F.L.estamp()
    T=32
    NL2E=f2u(-1.4426950408889634)
    G=T
    for j in range(20): e(f"v_mul_f32 v{G+j}, {NL2E:#x}, v{F6+j}")
    for j in range(20): e(f"v_exp_f32 v{G+j}, v{G+j}")
    for j in range(20): e(f"v_add_f32 v{G+j}, 1.0, v{G+j}")
    for j in range(20): e(f"v_rcp_f32 v{G+j}, v{G+j}")
    for j in range(20): e(f"v_mul_f32 v{F6+j}, v{F6+j}, v{G+j}")
    def xreg(s,d): return (XR+4*(s//2)+2*(s%2)+d) if s<4 else X4+d
    for s in range(5):
        for d in range(2):
            x=xreg(s,d); j=4*s+2*d
            e(f"v_lshlrev_b32 v{G}, 16, v{x}\nv_and_b32 v{G+1}, 0xffff0000, v{x}")
            e(f"v_fma_f32 v{G}, v{F6+j}, v{SACC+j}, v{G}\nv_fma_f32 v{G+1}, v{F6+j+1}, v{SACC+j+1}, v{G+1}")
            e(f"v_cvt_pk_bf16_f32 v{x}, v{G}, v{G+1}")
    for m in range(2):
        x=XR+4*m
        e(f"v_permlane16_swap_b32 v{x}, v{x+2}\nv_permlane16_swap_b32 v{x+1}, v{x+3}")
        e(f"buffer_store_dwordx4 v[{x}:{x+3}], v{V_RO}, s[{S_OUT}:{S_OUT+3}], s{(S_D0,S_D1)[m]} offen")
    e(f"buffer_store_dwordx2 v[{X4}:{X4+1}], v{V_R4}, s[{S_OUT}:{S_OUT+3}], s{S_D2} offen")
    F.L.estamp()
```

```python
from base import *

S_ST=[40,44,48]
S_WF=52
S_WK,S_OF,S_H0,S_H1,S_QA,S_QB=56,57,58,59,60,61
S_SC=62
S_X0,S_X1=64,65
S_Q0=66
S_Q2=67
S_FD=68
S_FS=69
S_SO=70
S_HS0,S_HS1=71,72
S_DBG,S_XS,S_CODE=84,88,92
V_P1F,V_P1Q,V_P3F,V_P3Q=211,212,213,214
V_QKO,V_HH,V_VO=215,206,207
V_SL=[216,217,218,219]
V_SB=[204,205]
HS=18432; SLOT=36864

S_DA,S_DM=73,74
def _run(e, srd, vpat, so, step, units, lds, tag, mreg=None):
    for u in units:
        if mreg is None: e(f"s_mov_b32 m0, {lds(u)}")
        else: e(f"s_add_u32 m0, s{mreg}, {lds(u)}")
        e(f"s_add_u32 s{S_T1}, s{so}, {u*step}")
        e(f"buffer_load_dwordx4 v{vpat}, s[{srd}:{srd+3}], s{S_T1} offen lds ; tag:{tag}")
def dma_first(self):
    e=self.e
    WQ=S_ST[0]; WG=S_ST[1]; WU=S_ST[2]
    e(f"s_cmp_ge_u32 s{S_CLS}, 2\ns_cbranch_scc1 L_dfs")
    e(f"s_lshl_b32 s{S_SO}, s{S_Q0}, 6")
    _run(e,WQ,V_P3Q,S_SO,8*3456,range(36),lambda u:u*1024,"st0")
    e(f"s_lshl_b32 s{S_SO}, s{S_Q2}, 6")
    _run(e,WQ,V_P1Q,S_SO,16*3456,range(18),lambda u:2*HS+u*1024,"st0")
    e("s_branch L_dfx")
    e("L_dfs:")
    e(f"s_lshl_b32 s{S_SO}, s{S_FS}, 6")
    _run(e,WG,V_P1F,S_SO,16*9216,range(18),lambda u:0*HS+u*1024,"st0")
    _run(e,WU,V_P1F,S_SO,16*9216,range(18),lambda u:1*HS+u*1024,"st0")
    e(f"s_cmp_eq_u32 s{S_CLS}, 3\ns_cbranch_scc1 L_dfx")
    e(f"s_lshl_b32 s{S_SO}, s{S_Q2}, 6")
    _run(e,WQ,V_P1Q,S_SO,16*3456,range(18),lambda u:2*HS+u*1024,"st0")
    e("L_dfx:")
def touch_first(self):
    e=self.e; L=V_LANE
    WQ=S_ST[0]; WG=S_ST[1]; WU=S_ST[2]
    e(f"""
    v_mul_u32_u24 v8, 3456, v{L}
    v_mul_u32_u24 v9, 9216, v{L}
    v_add_u32 v10, {64*3456}, v8
    v_add_u32 v11, {64*9216}, v9
    v_mov_b32 v12, 0x80000000
    v_cmp_gt_u32 vcc, 8, v{L}
    v_cndmask_b32 v10, v12, v10, vcc
    v_cndmask_b32 v11, v12, v11, vcc
    s_mul_i32 s{S_DA}, s{S_B}, {72*3456}
    s_mul_i32 s{S_DM}, s{S_B}, {72*9216}
    """)
    n=[16]
    def t(srd,col,q):
        e(f"s_lshl_b32 s{S_T1}, s{col}, 6\ns_add_u32 s{S_T1}, s{S_T1}, s{S_DA if q else S_DM}")
        e(f"buffer_load_dword v{n[0]}, v{8 if q else 9}, s[{srd}:{srd+3}], s{S_T1} offen")
        e(f"buffer_load_dword v{n[0]+1}, v{10 if q else 11}, s[{srd}:{srd+3}], s{S_T1} offen"); n[0]+=2
    e(f"s_cmp_ge_u32 s{S_CLS}, 2\ns_cbranch_scc1 L_tfs")
    t(WQ,S_Q0,True); t(WQ,S_Q2,True)
    e("s_branch L_tfx")
    e("L_tfs:")
    t(WG,S_FS,False); t(WU,S_FS,False)
    e(f"s_cmp_eq_u32 s{S_CLS}, 3\ns_cbranch_scc1 L_tfx")
    t(WQ,S_Q2,True)
    e("L_tfx:")
    e("s_waitcnt vmcnt(0)")
def dma_second(self):
    e=self.e
    WQ=S_ST[0]; WG=S_ST[1]; WU=S_ST[2]
    e(f"s_cmp_ge_u32 s{S_CLS}, 2\ns_cbranch_scc1 L_dma_s")
    e(f"s_lshl_b32 s{S_SO}, s{S_Q0}, 6\ns_mul_i32 s{S_DA}, s{S_W}, {12*8*3456}\ns_add_u32 s{S_SO}, s{S_SO}, s{S_DA}\ns_mul_i32 s{S_DM}, s{S_W}, {12*1024}")
    _run(e,WQ,V_P3Q,S_SO,8*3456,range(36,48),lambda u:(u-36+54)*1024,"st1",S_DM)
    e(f"s_lshl_b32 s{S_SO}, s{S_Q2}, 6\ns_mul_i32 s{S_DA}, s{S_W}, {6*16*3456}\ns_add_u32 s{S_SO}, s{S_SO}, s{S_DA}\ns_mul_i32 s{S_DM}, s{S_W}, {6*1024}")
    _run(e,WQ,V_P1Q,S_SO,16*3456,range(18,24),lambda u:(2+3)*HS+(u-18)*1024,"st1",S_DM)
    e("s_branch L_dma_j0")
    e("L_dma_s:")
    e(f"s_lshl_b32 s{S_SO}, s{S_FS}, 6\ns_mul_i32 s{S_DA}, s{S_W}, {6*16*9216}\ns_add_u32 s{S_SO}, s{S_SO}, s{S_DA}\ns_mul_i32 s{S_DM}, s{S_W}, {6*1024}")
    _run(e,WG,V_P1F,S_SO,16*9216,range(18,24),lambda u:(0+3)*HS+(u-18)*1024,"st1",S_DM)
    _run(e,WU,V_P1F,S_SO,16*9216,range(18,24),lambda u:(1+3)*HS+(u-18)*1024,"st1",S_DM)
    e(f"s_cmp_eq_u32 s{S_CLS}, 3\ns_cbranch_scc1 L_dma_j0")
    e(f"s_lshl_b32 s{S_SO}, s{S_Q2}, 6\ns_mul_i32 s{S_DA}, s{S_W}, {6*16*3456}\ns_add_u32 s{S_SO}, s{S_SO}, s{S_DA}")
    _run(e,WQ,V_P1Q,S_SO,16*3456,range(18,24),lambda u:(2+3)*HS+(u-18)*1024,"st1",S_DM)
    e("L_dma_j0:")
def dma_j0(self):
    e=self.e
    WG=S_ST[1]; WU=S_ST[2]
    e(f"s_lshl_b32 s{S_SO}, s{S_FD}, 6\ns_mul_i32 s{S_DA}, s{S_W}, {48*9216}\ns_add_u32 s{S_SO}, s{S_SO}, s{S_DA}\ns_mul_i32 s{S_DM}, s{S_W}, {12*1024}")
    for u in range(12):
        ks,m,h=u//4,(u>>1)&1,u&1
        e(f"s_add_u32 m0, s{S_DM}, {3*SLOT+u*1024}")
        e(f"s_add_u32 s{S_T1}, s{S_SO}, {(16*ks+8*h)*9216}")
        srd=WG if m==0 else WU
        e(f"buffer_load_dwordx4 v{V_P3F}, s[{srd}:{srd+3}], s{S_T1} offen lds ; tag:d3")

def phase0(self):
    k=self.k; e=self.e
    e(f"""
    s_cmp_ge_u32 s2, 256
    s_cbranch_scc1 L_end
    s_load_dwordx4 s[4:7], s[0:1], 0
    s_load_dwordx2 s[8:9], s[0:1], 16
    s_load_dwordx4 s[12:15], s[0:1], 32
    s_load_dwordx4 s[16:19], s[0:1], 48
    s_load_dwordx4 s[20:23], s[0:1], 64
    v_lshrrev_b32 v1, 6, v0
    v_and_b32 v{V_LANE}, 63, v0
    v_cmp_eq_u32 vcc, 0, v0
    v_mov_b32 v2, 0x80000000
    v_cndmask_b32 v{V_FLG}, v2, 0, vcc
    v_readfirstlane_b32 s{S_W}, v1
    v_lshlrev_b32 v{V_XO}, 4, v{V_LANE}
    v_mov_b32 v128, 0
    v_mov_b32 v129, {LDS_WORD}
    ds_write_b32 v129, v128
    ds_write_b32 v129, v128 offset:4
    ds_write_b32 v129, v128 offset:8
    s_lshr_b32 s{S_B}, s2, 5
    s_and_b32 s{S_X}, s2, 7
    s_bfe_u32 s{S_R}, s2, 0x20003
    """)
    k.srd(S_WS,P_WS,WS_USED if not self.prof else 0x10000000)
    k.srd(S_XS,P_X,2048*1152)
    k.srd(S_DBG,P_DBG,256)
    self.L.init(S_W,S_T0); self.L.estamp(real=True); self.L.estamp()
    e(f"""
    s_cmp_lg_u32 s2, 0
    s_cbranch_scc1 L_noep
    s_memrealtime s[{S_EP}:{S_EP+1}]
    s_waitcnt lgkmcnt(0)
    s_or_b32 s{S_EP}, s{S_EP}, 1
    v_mov_b32 v2, s{S_EP}
    v_mov_b32 v3, s{S_EP+1}
    buffer_store_dwordx2 v[2:3], v{V_FLG}, s[{S_DBG}:{S_DBG+3}], 0 offen sc1
    L_noep:
    """)
    L=V_LANE
    e(f"s_cmp_eq_u32 s{S_W}, 3\ns_cbranch_scc1 L_skipx")
    e(f"""
    v_and_b32 v1, 7, v{L}
    v_lshrrev_b32 v2, 3, v{L}
    s_lshl_b32 s{S_T0}, s2, 3
    v_add_u32 v3, s{S_T0}, v1
    v_mul_u32_u24 v4, 1152, v3
    v_lshlrev_b32 v5, 4, v2
    v_add_u32 v4, v4, v5
    """)
    for g in range(3):
        e(f"s_add_u32 s{S_T0}, s{S_W}, {g}")
        e(f"s_cmp_ge_u32 s{S_T0}, 3\ns_cselect_b32 s{S_T1}, 3, 0\ns_sub_u32 s{S_T0}, s{S_T0}, s{S_T1}")
        e(f"s_mul_i32 s{S_T0}, s{S_T0}, 384")
        for m in range(3):
            i=3*g+m
            e(f"buffer_load_dwordx4 v[{8+4*i}:{11+4*i}], v4, s[{S_XS}:{S_XS+3}], s{S_T0} offen offset:{128*m}")
    e(f"""
    s_getpc_b64 s[{S_CODE}:{S_CODE+1}]
    L_pcref:
    s_mov_b32 s{S_CODE+2}, L_codeend-L_pcref
    s_mov_b32 s{S_CODE+3}, 0x00020000
    s_lshr_b32 s{S_T0}, s2, 3
    s_mul_i32 s{S_T0}, s{S_T0}, 3
    s_add_u32 s{S_T0}, s{S_T0}, s{S_W}
    s_lshl_b32 s{S_T0}, s{S_T0}, 10
    buffer_load_dwordx4 v[124:127], v{V_XO}, s[{S_CODE}:{S_CODE+3}], s{S_T0} offen
    s_add_u32 s{S_T0}, s{S_T0}, {96*1024}
    buffer_load_dwordx4 v[132:135], v{V_XO}, s[{S_CODE}:{S_CODE+3}], s{S_T0} offen
    L_skipx:
    s_waitcnt lgkmcnt(0)
    s_barrier
    """)
    self.L.estamp()
    e(f"""
    s_mul_i32 s{S_T0}, s{S_X}, 18
    s_lshl_b32 s{S_T1}, s{S_R}, 2
    s_add_u32 s{S_FD}, s{S_T0}, s{S_T1}
    s_add_u32 s{S_FS}, s{S_T0}, s{S_R}
    s_add_u32 s{S_FS}, s{S_FS}, 16
    ; class: r=2 -> 0 ; r=3 -> x<4?0:1 ; r=0 -> x<6?2:3 ; r=1 -> 3
    s_cmp_lt_u32 s{S_X}, 4
    s_cselect_b32 s{S_T0}, 0, 1
    s_cmp_eq_u32 s{S_R}, 2
    s_cselect_b32 s{S_T0}, 0, s{S_T0}
    s_cmp_lt_u32 s{S_X}, 6
    s_cselect_b32 s{S_T1}, 2, 3
    s_cmp_eq_u32 s{S_R}, 1
    s_cselect_b32 s{S_T1}, 3, s{S_T1}
    s_cmp_ge_u32 s{S_R}, 2
    s_cselect_b32 s{S_CLS}, s{S_T0}, s{S_T1}
    s_cmp_eq_u32 s{S_R}, 3
    s_cselect_b32 s{S_T0}, 8, 0
    s_add_u32 s{S_T0}, s{S_T0}, s{S_X}
    s_lshl_b32 s{S_Q0}, s{S_T0}, 1
    s_cmp_eq_u32 s{S_CLS}, 1
    s_cselect_b32 s{S_T1}, 12, 0
    s_cselect_b32 s{S_T2}, 32, 24
    s_add_u32 s{S_Q0}, s{S_Q0}, s{S_T1}
    s_add_u32 s{S_Q2}, s{S_T0}, s{S_T2}
    s_add_u32 s{S_T0}, s{S_X}, 48
    s_cmp_eq_u32 s{S_CLS}, 2
    s_cselect_b32 s{S_Q2}, s{S_T0}, s{S_Q2}
    s_cmp_lt_u32 s{S_W}, 2
    s_cselect_b32 s{S_WF}, s{P_WG}, s{P_WU}
    s_cselect_b32 s{S_WF+1}, s{P_WG+1}, s{P_WU+1}
    s_mov_b32 s{S_WF+2}, {576*9216}
    s_mov_b32 s{S_WF+3}, 0x00020000
    s_lshl_b32 s{S_WK}, s{S_W}, 10
    """)
    k.srd(S_ST[0],P_WQKV,576*3456); k.srd(S_ST[1],P_WG,576*9216); k.srd(S_ST[2],P_WU,576*9216)
    e(f"""
    v_lshrrev_b32 v1, 2, v{L}               ; row 0..15
    v_and_b32 v2, 3, v{L}
    v_lshlrev_b32 v2, 4, v2                 ; piece*16
    v_mul_u32_u24 v{V_P1F}, 9216, v1
    v_add_u32 v{V_P1F}, v{V_P1F}, v2
    v_mul_u32_u24 v{V_P1Q}, 3456, v1
    v_add_u32 v{V_P1Q}, v{V_P1Q}, v2
    v_and_b32 v1, 7, v1                     ; row 0..7
    v_lshrrev_b32 v3, 5, v{L}
    v_lshlrev_b32 v3, 6, v3
    v_add_u32 v2, v2, v3
    v_mul_u32_u24 v{V_P3F}, 9216, v1
    v_add_u32 v{V_P3F}, v{V_P3F}, v2
    v_mul_u32_u24 v{V_P3Q}, 3456, v1
    v_add_u32 v{V_P3Q}, v{V_P3Q}, v2
    s_lshl_b32 s{S_OF}, s{S_FD}, 6
    s_and_b32 s{S_T0}, s{S_W}, 1
    s_mul_i32 s{S_T0}, s{S_T0}, {8*9216}
    s_add_u32 s{S_OF}, s{S_OF}, s{S_T0}
    s_add_u32 s{S_OF}, s{S_OF}, {0 if 'J' in __import__('os').environ.get('P0V','') else 144*9216}
    """)
    e(f"s_cmp_eq_u32 s{S_W}, 3\ns_cbranch_scc1 L_dma")
    if 'E' in __import__('os').environ.get('P0V',''):
        e(f"""
        v_lshrrev_b32 v140, 1, v{L}
        v_mul_u32_u24 v140, 9216, v140
        v_and_b32 v141, 1, v{L}
        v_lshl_add_u32 v140, v141, 7, v140
        v_add_u32 v141, {32*9216}, v140
        v_mov_b32 v142, 0x80000000
        v_cmp_gt_u32 vcc, 8, v{L}
        v_cndmask_b32 v141, v142, v141, vcc
        s_mul_i32 s{S_T0}, s{S_B}, 72
        s_and_b32 s{S_T1}, s{S_W}, 1
        s_mul_i32 s{S_T1}, s{S_T1}, 36
        s_add_u32 s{S_T0}, s{S_T0}, s{S_T1}
        s_mul_i32 s{S_T0}, s{S_T0}, 9216
        s_lshl_b32 s{S_T1}, s{S_FD}, 6
        s_add_u32 s{S_T0}, s{S_T0}, s{S_T1}
        buffer_load_dword v136, v140, s[{S_WF}:{S_WF+3}], s{S_T0} offen
        buffer_load_dword v137, v141, s[{S_WF}:{S_WF+3}], s{S_T0} offen
        s_cmp_lg_u32 s{S_W}, 2
        s_cbranch_scc1 L_notch3
        s_add_u32 s{S_T0}, s{S_T0}, {36*9216}
        buffer_load_dword v138, v140, s[{S_WF}:{S_WF+3}], s{S_T0} offen
        buffer_load_dword v139, v141, s[{S_WF}:{S_WF+3}], s{S_T0} offen
        L_notch3:
        """)
    U=48
    for j in range(36):
        e(f"v_lshlrev_b32 v{U+2*j}, 16, v{8+j}")
        e(f"v_and_b32 v{U+2*j+1}, 0xffff0000, v{8+j}")
    self.L.estamp()
    e(f"buffer_load_dwordx2 v[120:121], v128, s[{S_DBG}:{S_DBG+3}], 0 offen sc1")
    e(f"v_pk_add_f32 v[4:5], v[{U}:{U+1}], v[{U+2}:{U+3}]")
    e(f"v_pk_add_f32 v[6:7], v[{U+4}:{U+5}], v[{U+6}:{U+7}]")
    for j in range(4,36):
        a=4+2*(j&1)
        e(f"v_pk_add_f32 v[{a}:{a+1}], v[{a}:{a+1}], v[{U+2*j}:{U+2*j+1}]")
    e("v_pk_add_f32 v[4:5], v[4:5], v[6:7]\nv_add_f32 v4, v4, v5")
    def allred(r,t):
        e(f"v_add_f32_dpp v{r}, v{r}, v{r} row_ror:8 row_mask:0xf bank_mask:0xf")
        e(f"v_mov_b32 v{t}, v{r}")
        e(f"v_permlane16_swap_b32 v{r}, v{t}")
        e(f"v_add_f32 v{r}, v{r}, v{t}")
        e(f"v_mov_b32 v{t}, v{r}")
        e(f"v_permlane32_swap_b32 v{r}, v{t}")
        e(f"v_add_f32 v{r}, v{r}, v{t}")
    allred(4,5)
    e(f"v_mul_f32 v4, {f2u(1.0/576):#x}, v4")
    PM="op_sel_hi:[1,0] neg_lo:[0,1] neg_hi:[0,1]"
    e(f"v_pk_add_f32 v[44:45], v[{U}:{U+1}], v[4:5] {PM}")
    e(f"v_pk_mul_f32 v[6:7], v[44:45], v[44:45]")
    e(f"v_pk_add_f32 v[46:47], v[{U+2}:{U+3}], v[4:5] {PM}")
    e(f"v_pk_mul_f32 v[122:123], v[46:47], v[46:47]")
    for j in range(2,36):
        t=44+2*(j&1); a=6 if (j&1)==0 else 122
        e(f"v_pk_add_f32 v[{t}:{t+1}], v[{U+2*j}:{U+2*j+1}], v[4:5] {PM}")
        e(f"v_pk_fma_f32 v[{a}:{a+1}], v[{t}:{t+1}], v[{t}:{t+1}], v[{a}:{a+1}]")
    e("v_pk_add_f32 v[6:7], v[6:7], v[122:123]\nv_add_f32 v6, v6, v7")
    allred(6,7)
    e(f"v_mul_f32 v6, {f2u(1.0/576):#x}, v6")
    e("v_cvt_pk_bf16_f32 v7, v4, v6")
    e("v_lshlrev_b32 v4, 16, v7")
    e("v_and_b32 v6, 0xffff0000, v7")
    e(f"v_add_f32 v6, {f2u(1e-5):#x}, v6")
    e("v_cvt_pk_bf16_f32 v7, v6, v6")
    e("v_lshlrev_b32 v6, 16, v7")
    e("v_sqrt_f32 v6, v6")
    e("v_cvt_pk_bf16_f32 v7, v6, v6")
    e("v_lshlrev_b32 v6, 16, v7")
    e("v_rcp_f32 v6, v6")
    for j in range(12):
        a=U+2*j
        e(f"v_pk_add_f32 v[{a}:{a+1}], v[{a}:{a+1}], v[4:5] {PM}")
        e(f"v_cvt_pk_bf16_f32 v7, v{a}, v{a+1}")
        e(f"v_lshlrev_b32 v{a}, 16, v7\nv_and_b32 v{a+1}, 0xffff0000, v7")
        e(f"v_pk_mul_f32 v[{a}:{a+1}], v[{a}:{a+1}], v[6:7] op_sel_hi:[1,0]")
        e(f"v_cvt_pk_bf16_f32 v{8+j}, v{a}, v{a+1}")
    e(f"""
    s_lshr_b32 s{S_T0}, s2, 2
    s_mul_i32 s{S_T0}, s{S_T0}, 36864
    s_and_b32 s{S_T1}, s2, 3
    s_lshl_b32 s{S_T1}, s{S_T1}, 7
    s_add_u32 s{S_T0}, s{S_T0}, s{S_T1}
    s_mul_i32 s{S_T1}, s{S_W}, {3*4096}
    s_add_u32 s{S_T0}, s{S_T0}, s{S_T1}
    s_add_u32 s{S_T0}, s{S_T0}, {XF_OFF}
    v_lshrrev_b32 v2, 3, v{L}
    v_and_b32 v1, 7, v{L}
    v_lshrrev_b32 v4, 1, v2
    v_lshlrev_b32 v4, 10, v4
    v_and_b32 v5, 1, v2
    v_lshlrev_b32 v5, 9, v5
    v_add_u32 v4, v4, v5
    v_lshlrev_b32 v5, 4, v1
    v_add_u32 v4, v4, v5
    """)
    for m in range(3):
        e(f"buffer_store_dwordx4 v[{8+4*m}:{11+4*m}], v4, s[{S_WS}:{S_WS+3}], s{S_T0} offen sc1 ; tag:xs")
        if m<2: e(f"s_add_u32 s{S_T0}, s{S_T0}, 4096")
    self.L.estamp()
    import os
    P0V=os.environ.get("P0V","")
    if 'B' in P0V: e("v_mov_b32 v7, 1\nds_add_u32 v129, v7 offset:8")
    if 'A' not in P0V: dma_second(self)
    def get_epoch(tagl):
        e(f"""
        v_readfirstlane_b32 s{S_EP}, v120
        v_readfirstlane_b32 s{S_EP+1}, v121
        s_cmp_lg_u32 s{S_EP}, 0
        s_cbranch_scc1 L_gotep{tagl}
        s_mov_b32 s{S_T2}, 0
        L_eppoll{tagl}:
        buffer_load_dwordx2 v[120:121], v128, s[{S_DBG}:{S_DBG+3}], 0 offen sc1
        v_readfirstlane_b32 s{S_EP}, v120
        v_readfirstlane_b32 s{S_EP+1}, v121
        s_add_u32 s{S_T2}, s{S_T2}, 1
        s_cmp_lg_u32 s{S_EP}, 0
        s_cbranch_scc1 L_gotep{tagl}
        s_cmp_lt_u32 s{S_T2}, 0x20000
        s_cbranch_scc1 L_eppoll{tagl}
        L_gotep{tagl}:
        """)
    get_epoch("a")
    e(f"""
    v_mov_b32 v4, s{S_EP}
    v_mov_b32 v5, s{S_EP+1}
    v_cmp_eq_u32 vcc, 0, v{L}
    v_cndmask_b32 v7, 0, 1, vcc
    ds_add_rtn_u32 v6, v129, v7 offset:4 ; need:xs
    s_lshl_b32 s{S_T0}, s2, 7
    s_add_u32 s{S_T0}, s{S_T0}, {FLAG_OFF}
    s_waitcnt lgkmcnt(0)
    v_readfirstlane_b32 s{S_T1}, v6
    v_mov_b32 v6, 0x80000000
    s_cmp_eq_u32 s{S_T1}, 2
    s_cbranch_scc0 L_noflag
    v_cndmask_b32 v6, v6, 0, vcc
    buffer_store_dwordx2 v[4:5], v6, s[{S_WS}:{S_WS+3}], s{S_T0} offen sc1
    L_noflag:
    """)
    self.L.estamp()
    if 'A' in P0V: dma_second(self)
    if 'J' not in P0V: dma_j0(self)
    if 'N' in P0V: e("s_branch L_ldsw0")
    e(f"""
    s_cmp_eq_u32 s{S_W}, 2
    s_cselect_b32 s{S_T2}, 1, 0
    v_lshrrev_b32 v4, 1, v{L}
    v_mul_u32_u24 v4, 9216, v4
    v_and_b32 v5, 1, v{L}
    v_lshl_add_u32 v4, v5, 7, v4
    s_mul_i32 s{S_T0}, s{S_B}, 72
    s_and_b32 s{S_T1}, s{S_W}, 1
    s_mul_i32 s{S_T1}, s{S_T1}, 36
    s_add_u32 s{S_T0}, s{S_T0}, s{S_T1}
    s_mul_i32 s{S_T0}, s{S_T0}, 9216
    s_lshl_b32 s{S_T1}, s{S_FD}, 6
    s_add_u32 s{S_T0}, s{S_T0}, s{S_T1}
    buffer_load_dword v8, v4, s[{S_WF}:{S_WF+3}], s{S_T0} offen
    s_add_u32 s{S_T0}, s{S_T0}, {32*9216}
    buffer_load_dword v9, v4, s[{S_WF}:{S_WF+3}], s{S_T0} offen
    s_cmp_lg_u32 s{S_W}, 2
    s_cbranch_scc1 L_notch2
    s_add_u32 s{S_T0}, s{S_T0}, {4*9216}
    buffer_load_dword v10, v4, s[{S_WF}:{S_WF+3}], s{S_T0} offen
    s_add_u32 s{S_T0}, s{S_T0}, {32*9216}
    buffer_load_dword v11, v4, s[{S_WF}:{S_WF+3}], s{S_T0} offen
    L_notch2:
    """)
    e("s_branch L_ldsw0")
    e("L_dma:")
    if 'B' in P0V:
        e(f"""
        s_mov_b32 s{S_T2}, 0
        L_ldsb:
        ds_read_b32 v130, v129 offset:8
        s_waitcnt lgkmcnt(0)
        v_readfirstlane_b32 s{S_T0}, v130
        s_add_u32 s{S_T2}, s{S_T2}, 1
        s_cmp_ge_u32 s{S_T0}, {int(os.environ.get('P0N','192'))}
        s_cbranch_scc1 L_ldsbx
        s_sleep 1
        s_cmp_lt_u32 s{S_T2}, 0x400000
        s_cbranch_scc1 L_ldsb
        L_ldsbx:
        """)
    if 'T' in P0V: touch_first(self)
    if 'S' in P0V: self.L.estamp()
    dma_first(self)
    self.L.estamp()
    e(f"buffer_load_dwordx2 v[120:121], v128, s[{S_DBG}:{S_DBG+3}], 0 offen sc1")
    e(f"""
    s_lshl_b32 s{S_T0}, s2, 5
    v_add_u32 v4, s{S_T0}, v{L}
    v_mul_u32_u24 v4, 304, v4
    v_add_u32 v4, 288, v4
    v_mov_b32 v5, 0x80000000
    v_cmp_gt_u32 vcc, 32, v{L}
    v_cndmask_b32 v4, v5, v4, vcc
    v_mov_b32 v24, 0x3f803f80
    v_mov_b32 v25, 0x3f803f80
    v_mov_b32 v26, 0x3f803f80
    v_mov_b32 v27, 0x3f803f80
    s_mov_b32 s{S_T0}, {VT_OFF}
    buffer_store_dwordx4 v[24:27], v4, s[{S_WS}:{S_WS+3}], s{S_T0} offen sc1 ; tag:q
    """)
    get_epoch("b")
    if 'S' not in P0V: self.L.estamp()
    e(f"""
    s_mov_b32 s{S_T2}, 0
    L_ldsc:
    ds_read_b32 v130, v129 offset:4
    s_waitcnt lgkmcnt(0)
    v_readfirstlane_b32 s{S_T0}, v130
    s_add_u32 s{S_T2}, s{S_T2}, 1
    s_cmp_ge_u32 s{S_T0}, 3
    s_cbranch_scc1 L_ldscx
    s_sleep 1
    s_cmp_lt_u32 s{S_T2}, 0x400000
    s_cbranch_scc1 L_ldsc
    L_ldscx:
    """)
    self.L.estamp()
    e(f"v_and_b32 v30, 31, v{L}\nv_lshlrev_b32 v30, 7, v30")
    e(f"s_lshl_b32 s{S_T1}, s{S_B}, 12\ns_add_u32 s{S_T1}, s{S_T1}, {FLAG_OFF}")
    self.poll([30], S_T1, 32)
    e(f"v_mov_b32 v128, 1\nds_write_b32 v129, v128")
    e("s_branch L_join")
    e(f"""
    L_ldsw0:
    s_mov_b32 s{S_T2}, 0
    L_ldsw:
    ds_read_b32 v130, v129
    s_waitcnt lgkmcnt(0)
    v_readfirstlane_b32 s{S_T0}, v130
    s_add_u32 s{S_T2}, s{S_T2}, 1
    s_cmp_lg_u32 s{S_T0}, 0
    s_cbranch_scc1 L_join
    s_sleep 1
    s_cmp_lt_u32 s{S_T2}, 0x400000
    s_cbranch_scc1 L_ldsw
    L_join:
    """)
    self.L.estamp()
```

```python
from base import *
from p0 import *

S0,S1,X3=0,64,128
ARING=160; NR=4; PD=3
ET=176
def xreg(tile,ks):
    idx=(ks*2+tile)*4
    if idx<256: return f"a[{idx}:{idx+3}]"
    b=224+idx-256
    return f"v[{b}:{b+3}]"
def af(n): b=ARING+4*(n%NR); return b
def rd(n, vaddr, off):
    b=af(n)
    return [f"ds_read_b64_tr_b16 v[{b}:{b+1}], v{vaddr} offset:{off}",
            f"ds_read_b64_tr_b16 v[{b+2}:{b+3}], v{vaddr} offset:{off+256}"]

def epi_F(G0,U0,G1,U1,sh0=S_H0,sh1=S_H1,adv=True):
    ops=[]
    for t,(g,u) in enumerate(((G0,U0),(G1,U1))):
        T=ET+8*t
        for j in range(8):
            ops.append(f"v_mul_f32 v{g+2*j}, v{g+2*j}, v{u+2*j}")
            ops.append(f"v_mul_f32 v{g+2*j+1}, v{g+2*j+1}, v{u+2*j+1}")
        for j in range(8): ops.append(f"v_cvt_pk_bf16_f32 v{T+j}, v{g+2*j}, v{g+2*j+1}")
        sh=sh0 if t==0 else sh1
        for s in range(2):
            b=T+4*s
            ops.append(f"buffer_store_dwordx4 v[{b}:{b+3}], v{V_XO}, s[{S_WS}:{S_WS+3}], s{sh} offen offset:{1024*s} sc1 ; tag:h")
    if adv:
        ops.append(f"s_add_u32 s{sh0}, s{sh0}, 2048")
        ops.append(f"s_add_u32 s{sh1}, s{sh1}, 2048")
    return ops
def epi_set(S): return epi_F(S,S+16,S+32,S+48)
def epi_QK(a0,a1,sq,dq):
    ops=[]
    ops.append([f"s_add_u32 s{S_T0}, s{sq}, {dq}", f"s_cmp_lt_u32 s{S_T0}, 18",
                f"s_cselect_b32 s{S_SC}, {f2u(QSCALE):#x}, 1.0", f"s_mov_b32 s{S_SC+1}, s{S_SC}"])
    ops.append([f"s_lshl_b32 s{S_T0}, s{S_T0}, 17", f"s_add_u32 s{S_T1}, s{S_T0}, s{S_QA}"])
    for t,a in enumerate((a0,a1)):
        T=ET+8*t
        for j in range(16): ops.append(f"v_mul_f32 v{a+j}, s{S_SC}, v{a+j}")
        for j in range(8): ops.append(f"v_cvt_pk_bf16_f32 v{T+j}, v{a+2*j}, v{a+2*j+1}")
        for m in range(2):
            b=T+4*m
            ops.append(f"v_permlane32_swap_b32 v{b}, v{b+2}")
            ops.append(f"v_permlane32_swap_b32 v{b+1}, v{b+3}")
            ops.append([f"s_add_u32 s{S_T0}, s{S_T1}, {m*2*QK_OCT+t*512}",
                        f"buffer_store_dwordx4 v[{b}:{b+3}], v{V_QKO}, s[{S_WS}:{S_WS+3}], s{S_T0} offen sc1 ; tag:q"])
    return ops
def epi_V(a0,a1,sq,dq):
    ops=[]
    T=ET+16
    ops.append([f"s_add_u32 s{S_T0}, s{sq}, {dq}", f"s_sub_u32 s{S_T0}, s{S_T0}, 36", f"s_lshl_b32 s{S_T0}, s{S_T0}, 5"])
    ops+= [f"v_and_b32 v{T}, 31, v{V_LANE}",
           f"v_add_u32 v{T}, s{S_T0}, v{T}",
           f"v_mul_u32_u24 v{T+1}, 3641, v{T}",
           f"v_lshrrev_b32 v{T+1}, 16, v{T+1}",
           f"v_mul_u32_u24 v{T+2}, 18, v{T+1}",
           f"v_sub_u32 v{T+2}, v{T}, v{T+2}",
           f"v_mul_u32_u24 v{T+1}, {VT_HEAD}, v{T+1}",
           f"v_lshlrev_b32 v{T+2}, 4, v{T+2}",
           f"v_add_u32 v{T+1}, v{T+1}, v{T+2}",
           f"v_add_u32 v{V_VO}, v{T+1}, v{V_HH}"]
    for t,a in enumerate((a0,a1)):
        B=ET+8*t
        for j in range(8): ops.append(f"v_cvt_pk_bf16_f32 v{B+j}, v{a+2*j}, v{a+2*j+1}")
        for mu in range(2):
            b=B+4*mu
            ops.append([f"s_add_u32 s{S_T1}, s{S_QB}, {(t*2+mu)*608}",
                        f"buffer_store_dwordx4 v[{b}:{b+3}], v{V_VO}, s[{S_WS}:{S_WS+3}], s{S_T1} offen sc1 ; tag:q"])
    return ops

def fdma(slot, tag, last=False):
    l=[]
    for i in range(9):
        b=[f"buffer_load_dwordx4 v{V_P3F}, s[{S_WF}:{S_WF+3}], s{S_OF} offen lds ; tag:{tag}",
           f"s_add_u32 s{S_OF}, s{S_OF}, {16*9216}"]
        if last and i==8: b.append(f"s_sub_u32 s{S_OF}, s{S_OF}, {576*9216-128}")
        l.append(([f"s_add_u32 m0, s{S_WK}, {slot*SLOT+4096*i}"],b))
    return l

def xload(ks):
    out=[]
    for t in (0,1):
        sx=S_X0 if t==0 else S_X1
        out.append(f"buffer_load_dwordx4 {xreg(t,ks)}, v{V_XO}, s[{S_WS}:{S_WS+3}], s{sx} offen offset:{(ks%4)*1024} sc1")
    if ks%4==3: out+= [f"s_add_u32 s{S_X0}, s{S_X0}, 4096", f"s_add_u32 s{S_X1}, s{S_X1}, 4096"]
    return out

def foff(n):
    part,r=divmod(n,18); ks,m=divmod(r,2)
    return ks*4096+m*2048+part*512

def interval(self, iv, slot, nslot, epiA=None, epiB=None, dmas=(), need=None, after_bar=None, pre_next=True, bar=True, extra=None):
    e=self.e
    mf=[]
    for part,S in enumerate((S0,S1)):
        G0,U0,G1,U1=S,S+16,S+32,S+48
        for kl in range(9):
            ks=9*iv+kl
            c=lambda a: ("0" if ks==0 else r16(a))
            for m,(a0,a1) in enumerate(((G0,G1),(U0,U1))):
                n=18*part+2*kl+m
                A=r4(af(n))
                mf.append(f"{MF} {r16(a0)}, {A}, {xreg(0,ks)}, {c(a0)}")
                mf.append(f"{MF} {r16(a1)}, {A}, {xreg(1,ks)}, {c(a1)}")
    fill=[[] for _ in range(72)]
    if bar:
        fill[0]+=[f"s_barrier" + (f" ; need:{need}" if need else "")]
        if after_bar: fill[0]+=after_bar
    for n in range(36):
        m=n+PD
        if m<36: fill[2*n]+=rd(m,V_SL[slot],foff(m))
        elif pre_next: fill[2*n]+=rd(m,V_SL[nslot],foff(m-36))
    dl=[d for g in dmas for d in g]
    if dl:
        span=62
        for i,(a,b) in enumerate(dl):
            p=2+(i*span)//len(dl)
            fill[p]+=a; fill[p+1]+=b
    if epiA: spread(fill, epiA, 3, 35)
    if epiB: spread(fill, epiB, 39, 71)
    if extra:
        for (ops,lo,hi) in extra: spread(fill, ops, lo, hi)
    if self.fine:
        fill[35]+=self.L.stamp()
        fill[71]+=self.L.stamp()
    for i in range(72):
        e(mf[i])
        for s in fill[i]: e(s)

def startup(self, cls):
    e=self.e
    kinds={0:"KKK",1:"VVV",2:"GUV",3:"GU"}[cls]
    NS=len(kinds)
    accs=[(64,80),(96,112),(X3,X3+16)]
    D=8
    mf=[]
    for ks in range(36):
        for s in range(NS):
            n=NS*ks+s
            A=r4(af(n))
            for t in (0,1):
                a=accs[s][t]
                c="0" if ks==0 else r16(a)
                if kinds[s]=='V': mf.append(f"{MF} {r16(a)}, {xreg(t,ks)}, {A}, {c}")
                else:             mf.append(f"{MF} {r16(a)}, {A}, {xreg(t,ks)}, {c}")
    NM=len(mf); per=2*NS
    fill=[[] for _ in range(NM)]
    def frd(n):
        ks,s=divmod(n,NS)
        hf,kl=divmod(ks,18)
        if cls<2 and s<2:
            return rd(n,V_SL[0] if hf==0 else V_VO2,kl*2048+s*512)
        return rd(n,V_SB[hf],s*HS+kl*1024)
    NF=36*NS
    for n in range(NF):
        m=n+PD
        if m<NF: fill[2*n]+=frd(m)
        elif True: fill[2*n]+=rd(m,V_SL[3],foff(m-NF))
    assert NF%NR==0
    for ks in range(36-D):
        l=xload(ks+D)
        fill[per*ks+1]+=l[:1]; fill[per*ks+3]+=l[1:]
    mid=2*(NS*18-PD)-1
    import os
    JV='J' in os.environ.get('P0V','')
    fill[mid]+=["s_barrier ; need:st1"+("" if JV else " need:d3")]
    if JV:
        d=fdma(3,"d3")
        lo=per*int(os.environ.get('JLO','3')); w=(per*int(os.environ.get('JHI','15'))-lo)//9
        for i,(a,b) in enumerate(d):
            fill[lo+w*i]+=a; fill[lo+w*i+1]+=b
        fill[2*(NF-PD)-1]+=["s_barrier ; need:d3"]
    mid2=per*18-1
    fill[mid2]+=["s_barrier"]
    if 'M' in os.environ.get('P0V',''):
        tp=mid2+1 if 'm' not in os.environ.get('P0V','') else per*int(os.environ.get('TP','8'))
        fill[tp]+=[f"buffer_load_dword v8, v2, s[{S_WF}:{S_WF+3}], s{S_SO} offen"]
        fill[tp+2]+=[f"buffer_load_dword v9, v3, s[{S_WF}:{S_WF+3}], s{S_SO} offen"]
    d=fdma(0,"d0")
    w=(NM-mid2-8)//9
    for i,(a,b) in enumerate(d):
        fill[mid2+1+w*i]+=a; fill[mid2+2+w*i]+=b
    for ks in range(D):
        for s in xload(ks): e(s)
    e("s_barrier ; need:st0")
    for n in range(PD):
        for s in frd(n): e(s)
    fill[mid2]+=self.L.stamp()
    for i in range(NM):
        e(mf[i])
        for s in fill[i]: e(s)
    self.L.estamp()
    if cls==0:
        epA=epi_QK(accs[0][0],accs[0][1],S_Q0,0)+epi_QK(accs[1][0],accs[1][1],S_Q0,1); epB=epi_QK(accs[2][0],accs[2][1],S_Q2,0)
    elif cls==1:
        epA=epi_V(accs[0][0],accs[0][1],S_Q0,0)+epi_V(accs[1][0],accs[1][1],S_Q0,1); epB=epi_V(accs[2][0],accs[2][1],S_Q2,0)
    elif cls==2:
        epA=epi_F(accs[0][0],accs[1][0],accs[0][1],accs[1][1],S_HS0,S_HS1,False); epB=epi_V(accs[2][0],accs[2][1],S_Q2,0)
    else:
        epA=epi_F(accs[0][0],accs[1][0],accs[0][1],accs[1][1],S_HS0,S_HS1,False); epB=None
    return epA,epB

V_VO2=203

def phase1(self):
    k=self.k; e=self.e; L=V_LANE; T=ET
    e(f"""
    v_lshrrev_b32 v{T}, 5, v{L}              ; h
    v_bfe_u32 v{T+1}, v{L}, 2, 2             ; r
    v_lshlrev_b32 v{T+1}, 6, v{T+1}          ; r*64
    v_bfe_u32 v{T+3}, v{L}, 4, 1
    v_lshlrev_b32 v{T+3}, 5, v{T+3}
    v_and_b32 v{T+4}, 3, v{L}
    v_lshlrev_b32 v{T+5}, 3, v{T+4}
    v_add_u32 v{T+1}, v{T+1}, v{T+3}
    v_add_u32 v{T+1}, v{T+1}, v{T+5}         ; r*64 + (G%2)*32 + c*8
    v_lshlrev_b32 v{T+2}, 9, v{T}
    v_add_u32 v{V_SB[0]}, v{T+1}, v{T+2}     ; + h*512
    v_add_u32 v{V_SB[1]}, {3*HS}, v{V_SB[0]}
    v_lshlrev_b32 v{T+2}, 10, v{T}
    v_add_u32 v{V_SL[0]}, v{T+1}, v{T+2}     ; + h*1024
    v_add_u32 v{V_SL[1]}, {SLOT}, v{V_SL[0]}
    v_add_u32 v{V_SL[2]}, {2*SLOT}, v{V_SL[0]}
    v_add_u32 v{V_SL[3]}, {3*SLOT}, v{V_SL[0]}
    v_add_u32 v{V_VO2}, {3*HS}, v{V_SL[0]}
    v_and_b32 v{T+8}, 31, v{L}
    v_lshlrev_b32 v{T+8}, 4, v{T+8}
    v_lshlrev_b32 v{T+9}, 15, v{T}
    v_add_u32 v{V_QKO}, v{T+8}, v{T+9}
    v_mul_u32_u24 v{V_HH}, 304, v{T}
    s_lshl_b32 s{S_T0}, s{S_B}, 3
    s_lshl_b32 s{S_T1}, s{S_W}, 1
    s_add_u32 s{S_T0}, s{S_T0}, s{S_T1}
    s_mul_i32 s{S_X0}, s{S_T0}, 36864
    s_add_u32 s{S_X0}, s{S_X0}, {XF_OFF}
    s_add_u32 s{S_X1}, s{S_X0}, 36864
    s_mul_i32 s{S_T2}, s{S_T0}, {288*1024}
    s_add_u32 s{S_T2}, s{S_T2}, {HF_OFF}
    s_lshl_b32 s{S_T1}, s{S_FD}, 11
    s_add_u32 s{S_H0}, s{S_T2}, s{S_T1}
    s_add_u32 s{S_H1}, s{S_H0}, {288*1024}
    s_lshl_b32 s{S_T1}, s{S_FS}, 11
    s_add_u32 s{S_HS0}, s{S_T2}, s{S_T1}
    s_add_u32 s{S_HS1}, s{S_HS0}, {288*1024}
    s_lshl_b32 s{S_QA}, s{S_T0}, 9           ; token0*16
    s_add_u32 s{S_QA}, s{S_QA}, {QK_OFF}
    s_mul_i32 s{S_QB}, s{S_T0}, {2*608}
    s_add_u32 s{S_QB}, s{S_QB}, {VT_OFF}
    v_lshrrev_b32 v2, 1, v{L}
    v_mul_u32_u24 v2, 9216, v2
    v_and_b32 v3, 1, v{L}
    v_lshl_add_u32 v2, v3, 7, v2
    v_add_u32 v3, {32*9216}, v2
    v_mov_b32 v4, 0x80000000
    v_cmp_gt_u32 vcc, 8, v{L}
    v_cndmask_b32 v3, v4, v3, vcc
    s_mul_i32 s{S_T0}, s{S_B}, 72
    s_and_b32 s{S_T1}, s{S_W}, 1
    s_mul_i32 s{S_T1}, s{S_T1}, 36
    s_add_u32 s{S_T0}, s{S_T0}, s{S_T1}
    s_mul_i32 s{S_T0}, s{S_T0}, 9216
    s_lshl_b32 s{S_T1}, s{S_FD}, 6
    s_add_u32 s{S_SO}, s{S_T0}, s{S_T1}
    s_cmp_eq_u32 s{S_CLS}, 1
    s_cbranch_scc1 L_cls1
    s_cmp_eq_u32 s{S_CLS}, 2
    s_cbranch_scc1 L_cls2
    s_cmp_eq_u32 s{S_CLS}, 3
    s_cbranch_scc1 L_cls3
    """)
    for cls in (0,1,2,3):
        if cls: e(f"L_cls{cls}:")
        epA,epB=startup(self,cls)
        interval(self,0,3,0,epiA=epA,epiB=epB,dmas=(fdma(1,"d1"),fdma(2,"d2",True)),need="d0")
        if cls<3: e("s_branch L_j1")
    e("L_j1:")
    interval(self,1,0,1,dmas=(fdma(3,"d3"),),need="d1 need:q",after_bar=self.flag_store(1,ET+20))
    interval(self,2,1,2,dmas=(fdma(0,"d0"),),need="d2")
    interval(self,3,2,3,epiB=epi_set(S0),dmas=(fdma(1,"d1"),),need="d3")
    interval(self,0,3,0,epiA=epi_set(S1),dmas=(fdma(2,"d2"),),need="d0")
    H=getattr(self,'hook',None)
    if H is None:
        interval(self,1,0,1,need="d1")
        interval(self,2,1,2,need="d2")
        interval(self,3,2,3,epiB=epi_set(S0),pre_next=False,bar=False)
        for s in epi_set(S1): e(s)
    else:
        interval(self,1,0,1,need="d1",extra=H.j5())
        H.pre6()
        interval(self,2,1,2,need="d2",extra=H.j6())
        interval(self,3,2,3,epiB=epi_set(S0),pre_next=False,need="kv",extra=H.j7())
        self.final_epi=epi_set(S1)
    self.L.estamp()
```
